```python
import torch

def _softmax(x, axis=-1):
    return torch.softmax(x, dim=axis)
def _gelu(x):
    return torch.nn.functional.gelu(x, approximate="tanh")
def _silu(x):
    return torch.nn.functional.silu(x)
def _sigmoid(x):
    return torch.sigmoid(x)
def _layernorm(x, axis=-1, eps=1e-5):
    m = x.mean(dim=axis, keepdim=True)
    v = x.var(dim=axis, keepdim=True, unbiased=False)
    return (x - m) / torch.sqrt(v + eps)
def _scatter_add(tgt, idx, src, axis=0):
    return tgt.clone().index_add_(axis, idx, src)
def _segment_sum(src, seg, n):
    out = torch.zeros((n,) + src.shape[1:], dtype=src.dtype)
    return out.index_add_(0, seg, src)
def _pad(x, pw):
    flat = tuple(v for pair in reversed(pw) for v in pair)
    return torch.nn.functional.pad(x, flat)

kernel_name = 'parallel_sum__linear_attn_block__glu_gated_swiglu__prompt'

def setup_inputs():

    _w = (lambda a: (lambda t: t.to(torch.bfloat16) if t.is_floating_point() else t)(torch.as_tensor(a)))
    def _A_setup():
        B, S, D = 1, 2048, 512
        return {
            "x": _w((lambda *s: torch.randn(*s, dtype=torch.bfloat16) * 0.05)(B, S, D)),
            "wqkv": _w((lambda *s: torch.randn(*s, dtype=torch.bfloat16) * 0.05)(D, 3 * D)),
            "wo": _w((lambda *s: torch.randn(*s, dtype=torch.bfloat16) * 0.05)(D, D)),
        }
    _A_in = _A_setup()

    def _B_setup():
        B, S, D, F = 1, 2048, 512, 1792
        return {
            "x": _w((lambda *s: torch.randn(*s, dtype=torch.bfloat16) * 0.05)(B, S, D)),
            "w1": _w((lambda *s: torch.randn(*s, dtype=torch.bfloat16) * 0.2)(D, F) * (2.0 / D) ** 0.5),
            "w3": _w((lambda *s: torch.randn(*s, dtype=torch.bfloat16) * 0.2)(D, F) * (2.0 / D) ** 0.5),
            "w2": _w((lambda *s: torch.randn(*s, dtype=torch.bfloat16) * 0.2)(F, D) * (2.0 / F) ** 0.5),
        }
    _B_in = _B_setup()

    return {
        "A_x": _A_in["x"],
        "A_wqkv": _A_in["wqkv"],
        "A_wo": _A_in["wo"],
        "B_x": _B_in["x"],
        "B_w1": _B_in["w1"],
        "B_w3": _B_in["w3"],
        "B_w2": _B_in["w2"],
    }

def reference(A_x, A_wqkv, A_wo, B_x, B_w1, B_w3, B_w2):
    def _A_ref(x, wqkv, wo):
        B, S, D = x.shape
        H = 32; Dh = D // H
        qkv = (lambda x, *d: x.permute(*d))((x @ wqkv).reshape(B, S, 3, H, Dh), 2, 0, 3, 1, 4)
        q, k, v = qkv[0], qkv[1], qkv[2]
        phi = lambda t: torch.where(t > 0, t + 1, torch.exp(t)) + 1e-6
        pq, pk = phi(q), phi(k)
        kv = torch.einsum("bhsd,bhse->bhde", pk, v)
        z = torch.einsum("bhsd->bhd", pk)
        num = torch.einsum("bhqd,bhde->bhqe", pq, kv)
        den = torch.einsum("bhqd,bhd->bhq", pq, z)[..., None] + 1e-6
        o = num / den
        return (lambda x, *d: x.permute(*d))(o, 0, 2, 1, 3).reshape(B, S, D) @ wo

    def _B_ref(x, w1, w3, w2):
        gate = torch.einsum("bsd,df->bsf", x, w1)
        up = torch.einsum("bsd,df->bsf", x, w3)
        h = _silu(gate) * up
        out = torch.einsum("bsf,fd->bsd", h, w2)
        return out

    x = A_x
    xn = _layernorm(x, axis=-1)
    return x + _A_ref(xn, A_wqkv, A_wo) + _B_ref(xn, B_w1, B_w3, B_w2)
```

```python
import re

TRANS = ('v_exp_f32', 'v_log_f32', 'v_rcp_f32', 'v_rsq_f32', 'v_sqrt_f32', 'v_sin_f32', 'v_cos_f32')

def _regs(tok):
    tok = tok.strip()
    tok = re.sub(r'^-', '', tok)
    tok = re.sub(r'^\|(.*)\|$', r'\1', tok)
    tok = re.sub(r'^abs\((.*)\)$', r'\1', tok)
    m = re.fullmatch(r'([vsa])\[(\d+):(\d+)\]', tok)
    if m:
        return {f'{m.group(1)}{i}' for i in range(int(m.group(2)), int(m.group(3)) + 1)}
    m = re.fullmatch(r'([vsa])(\d+)', tok)
    if m:
        return {tok}
    if tok in ('vcc', 'vcc_lo', 'vcc_hi'):
        return {'vcc'}
    if tok in ('exec', 'exec_lo', 'exec_hi'):
        return {'exec'}
    if tok == 'm0':
        return {'m0'}
    return set()

class Ins:
    __slots__ = ('text', 'op', 'dst', 'src', 'cls', 'passes', 'srcC', 'srcAB', 'dpp')
    def __init__(self, text):
        self.text = text
        body = text.split(';')[0].strip()
        parts = body.split(None, 1)
        self.op = parts[0]
        op = self.op
        rest = parts[1] if len(parts) > 1 else ''
        ops = []
        depth = 0; cur = ''
        for ch in rest:
            if ch == '[': depth += 1
            if ch == ']': depth -= 1
            if ch == ',' and depth == 0:
                ops.append(cur); cur = ''
            else:
                cur += ch
        if cur.strip(): ops.append(cur)
        toks = []
        for o in ops:
            o = o.strip()
            toks.append(o.split()[0] if o else '')
        self.dpp = ('quad_perm' in body or 'row_' in body or 'wave_' in body) and op.startswith('v_')
        self.passes = 0; self.srcC = set(); self.srcAB = set()
        dst = set(); src = set()
        R = [_regs(t) for t in toks]
        if op.startswith('v_mfma'):
            self.cls = 'mfma'
            self.passes = 8 if '32x32' in op else 4
            dst = R[0]; self.srcAB = R[1] | R[2]; self.srcC = R[3] if len(R) > 3 else set()
            src = self.srcAB | self.srcC
        elif op.startswith('v_cmp'):
            self.cls = 'valu'
            dst = R[0]; src = set().union(*R[1:])
        elif op.startswith('v_readfirstlane') or op.startswith('v_readlane'):
            self.cls = 'valu'
            dst = R[0]; src = set().union(*R[1:])
        elif op.startswith('v_permlane'):
            self.cls = 'valu'
            dst = R[0] | R[1]; src = R[0] | R[1]
        elif op.startswith('v_'):
            self.cls = 'trans' if op.replace('_e32', '').replace('_e64', '') in TRANS else 'valu'
            dst = R[0]
            src = set().union(*R[1:]) if len(R) > 1 else set()
            if op.startswith('v_add_co') or op.startswith('v_sub_co') or op.startswith('v_addc_co') or op.startswith('v_subb_co'):
                dst = R[0] | R[1]; src = set().union(*R[2:])
            if op.startswith('v_fmac') or op.startswith('v_dot2c') or op.startswith('v_writelane') or self.dpp:
                src |= R[0]
            if op.startswith('v_cndmask') and len(R) == 3:
                src |= {'vcc'}
            if op.startswith('v_mad_u64_u32'):
                dst = R[0] | R[1]; src = set().union(*R[2:])
        elif op.startswith('ds_'):
            self.cls = 'ds'
            if op.startswith('ds_read') or op.startswith('ds_bpermute') or op.startswith('ds_swizzle'):
                dst = R[0]; src = set().union(*R[1:])
            else:
                src = set().union(*R)
        elif op.startswith('buffer_') or op.startswith('global_') or op.startswith('flat_'):
            self.cls = 'vmem'
            is_lds = (' lds' in (' ' + body)) or ('load_lds' in op)
            if op in ('buffer_inv', 'buffer_wbl2'):
                pass
            elif 'load' in op and not is_lds:
                dst = R[0]; src = set().union(*R[1:])
            elif 'atomic' in op and 'sc0' in body:
                dst = R[0]; src = set().union(*R[1:])
            else:
                src = set().union(*R)
                if is_lds: src |= {'m0'}
        elif op.startswith('s_'):
            self.cls = 'salu'
            if op in ('s_waitcnt', 's_nop', 's_barrier', 's_sleep', 's_setprio', 's_endpgm', 's_branch') or op.startswith('s_cbranch'):
                if 'vcc' in op: src = {'vcc'}
                if 'exec' in op: src = {'exec'}
            elif op.startswith('s_cmp'):
                src = set().union(*R)
            elif op.startswith('s_load') or op.startswith('s_memtime') or op.startswith('s_memrealtime'):
                self.cls = 'smem'
                dst = R[0]; src = set().union(*R[1:]) if len(R) > 1 else set()
            elif 'saveexec' in op:
                dst = R[0] | {'exec'}; src = set().union(*R[1:]) | {'exec'}
            else:
                dst = R[0] if R else set(); src = set().union(*R[1:]) if len(R) > 1 else set()
        else:
            raise ValueError('unknown instruction class: ' + text)
        self.dst = dst; self.src = src

def is_v(r): return r[0] == 'v' and r != 'vcc'
def is_s(r): return (r[0] == 's') or r == 'vcc'

def need_states(prev, cur):
    n = 0
    pv = prev.cls in ('valu', 'trans')
    cv = cur.cls in ('valu', 'trans')
    if pv and cur.cls == 'mfma' and any(is_v(r) for r in prev.dst & cur.src): n = max(n, 2)
    if prev.cls == 'mfma':
        p8 = prev.passes == 8
        D = prev.dst
        if cur.cls == 'mfma':
            if D & cur.srcAB: n = max(n, 12 if p8 else 8)
            if D & cur.srcC and not (D == cur.srcC and prev.passes == cur.passes): n = max(n, 10 if p8 else 6)
            if D & cur.dst and not (D == cur.dst): n = max(n, 10 if p8 else 6)
        elif cur.cls in ('valu', 'trans', 'ds', 'vmem'):
            if D & (cur.src | cur.dst): n = max(n, 12 if p8 else 8)
        if cv and (prev.srcC & cur.dst): n = max(n, 7 if p8 else 3)
    if prev.cls == 'trans' and (prev.dst & cur.src) and cur.cls != 'salu': n = max(n, 1)
    if prev.op.startswith('v_dot') and (prev.dst & (cur.src | cur.dst)):
        same_c = (cur.op == prev.op)
        if same_c:
            toks = cur.text.split(None, 1)[1].split(',')
            ab = set()
            for t in toks[1:3]: ab |= _regs(t.strip().split()[0])
            if prev.dst & ab: n = max(n, 3)
        else:
            n = max(n, 3)
    if pv:
        sd = {r for r in prev.dst if is_s(r)}
        if sd & cur.src:
            if cv: n = max(n, 4 if (cur.op.startswith('v_readlane') or cur.op.startswith('v_writelane')) else 2)
            elif cur.cls == 'vmem': n = max(n, 5)
            elif cur.cls in ('salu', 'smem'): n = max(n, 4)
        vd = {r for r in prev.dst if is_v(r)}
        if vd & cur.src:
            if cur.op.startswith('v_readfirstlane') or cur.op.startswith('v_readlane'): n = max(n, 1)
            if cur.dpp or cur.op.startswith('v_permlane'): n = max(n, 2)
    if prev.cls == 'salu' and 'm0' in prev.dst and 'm0' in cur.src and cur.cls in ('vmem', 'ds'): n = max(n, 1)
    if prev.cls == 'vmem' and ('store' in prev.op or 'atomic' in prev.op) and ('x4' in prev.op or 'x3' in prev.op):
        if cv and any(is_v(r) for r in prev.src & cur.dst): n = max(n, 2)
    if prev.cls == 'ds' and prev.op.startswith('ds_write') and ('b128' in prev.op or 'b96' in prev.op):
        if cv and any(is_v(r) for r in prev.src & cur.dst): n = max(n, 2)
    return n

class Emitter:
    def __init__(self):
        self.lines = []
    def __call__(self, s):
        for l in s.split('\n'):
            l = l.strip()
            if l: self.lines.append(l)
    def raw(self, s):
        self.lines.append(s)
    def label(self, name):
        self.lines.append(name + ':')
    def comment(self, s):
        self.lines.append('; ' + s)

def is_instr(l):
    if not l or l.startswith(';') or l.startswith('.') or l.endswith(':'): return False
    return True

def pad_hazards(lines, window=22, verbose=False):
    out = []
    hist = []
    added = 0
    for l in lines:
        if not is_instr(l):
            out.append(l); continue
        ins = Ins(l)
        need = 0
        dist = 0
        for prev, st in reversed(hist):
            req = need_states(prev, ins)
            if req - dist > need: need = req - dist
            dist += st
            if dist >= window: break
        while need > 0:
            k = min(need, 16)
            out.append(f's_nop {k-1}')
            hist.append((Ins(f's_nop {k-1}'), k))
            need -= k; added += 1
        out.append(l)
        st = 1
        if ins.op == 's_nop':
            st = int(l.split()[1], 0) + 1
        hist.append((ins, st))
        if len(hist) > 64: hist.pop(0)
    if verbose: print(f'; hazard pass added {added} s_nop', flush=True)
    return out
```

```python
import sys
from asmlib import Emitter, pad_hazards

NAME = 'parallel_sum__linear_attn_block__glu_gated_swiglu__prompt'

STAGE = 53248
WOFF = 32768
STATS = 3 * STAGE
ROWSTAT = STATS
COLSUM = STATS + 2048
LDS_TOTAL = 163840
WS_H = 0
WS_PQ = 0x700000
WS_KV = 0x900000
WS_CNT = WS_KV + 36864
KV_STRIDE = 1152
WS_RS = 0x920000
ZERO_BYTES = 36864 + 9 * 256

LOG2E = 1.4426950408889634
LN2 = 0.6931471805599453

import struct
def f2u(x): return struct.unpack('<I', struct.pack('<f', x))[0]
def fhex(x): return '0x%08x' % f2u(x)

class VM:
    def __init__(self, e): self.e = e; self.n = 0; self.tags = {}
    def issue(self, tag=None):
        self.n += 1
        if tag is not None: self.tags[tag] = self.n
    def wait(self, tag):
        k = self.n - self.tags[tag]
        assert 0 <= k <= 63, k
        self.e(f's_waitcnt vmcnt({k})')
    def wait_all(self): self.e('s_waitcnt vmcnt(0)')

S_X, S_WQKV, S_WO, S_W1, S_W3, S_W2, S_OUT, S_DBG, S_WS = 4, 6, 8, 12, 14, 16, 18, 20, 22
S_WAVE = 24; S_R = 25; S_TYPE = 26; S_I = 27
S_P0, S_P1, S_Q0, S_Q1 = 28, 30, 32, 34
S_PM, S_PQ = 36, 37
S_W = 38
S_SRDX = 40
S_T0, S_T1, S_T2, S_T3 = 44, 45, 46, 47
S_LDSX, S_LDSW, S_XROW = 48, 49, 50
S_KAPM, S_KAP4, S_HEAD = 51, 52, 53
S_DELTA = 54; S_SLAB = 55
S_HB0, S_HB1 = 56, 58
S_H40, S_H41 = 60, 62
S_EX = 64
S_KVB = 66
S_CNT = 68
S_MASKK = 70
S_C1 = 72
S_PROD = 78
S_MASKH = 79

S_R2, S_C2, S_X8 = 39, 36, 37
S_SRDW2 = 28; S_SRDWO = 32
NSTAMP = 11
STAMPS = False
EXP = set()
S_ST = 80
WS_STAMP = 0xA00000
def stamp(e, i, real=False):
    if STAMPS:
        e(f's_memrealtime s[{S_ST+2*i}:{S_ST+2*i+1}]' if real else f's_memtime s[{S_ST+2*i}:{S_ST+2*i+1}]')
def stamp_flush(e):
    if not STAMPS: return
    e('s_waitcnt lgkmcnt(0)')
    e(f's_lshl_b32 s{S_T0}, s2, 3')
    e(f's_add_u32 s{S_T0}, s{S_T0}, s{S_WAVE}')
    e(f's_lshl_b32 s{S_T0}, s{S_T0}, 7')
    e(f's_add_u32 s{S_T0}, s{S_T0}, {WS_STAMP}')
    e(f's_add_u32 s{S_T2}, s{S_WS}, s{S_T0}'); e(f's_addc_u32 s{S_T3}, s{S_WS+1}, 0')
    e(f's_mov_b64 s[{S_EX}:{S_EX+1}], exec'); e('s_mov_b64 exec, 1')
    e('v_mov_b32 v1, 0')
    for i in range(NSTAMP):
        e(f'v_mov_b32 v2, s{S_ST+2*i}'); e(f'v_mov_b32 v3, s{S_ST+2*i+1}')
        e(f'global_store_dwordx2 v1, v[2:3], s[{S_T2}:{S_T3}] offset:{8*i}')
        e('s_nop 1')
    e(f's_mov_b64 exec, s[{S_EX}:{S_EX+1}]')

def pair(s): return f's[{s}:{s+1}]'
def vr(a, n=1): return f'v{a}' if n == 1 else f'v[{a}:{a+n-1}]'

def emit_common_decode(e):
    e(f's_load_dwordx16 s[4:19], s[0:1], 0')
    e(f's_load_dwordx4 s[20:23], s[0:1], 64')
    e('s_cmp_ge_u32 s2, 256')
    e('s_cbranch_scc1 L_end')
    e('v_lshrrev_b32 v1, 6, v0')
    e('v_and_b32 v0, 63, v0')
    e(f'v_readfirstlane_b32 s{S_WAVE}, v1')
    stamp(e, 0, real=True)
    stamp(e, 1)
    if 'nopf' not in EXP:
        e('s_getpc_b64 s[28:29]')
        e.label('L_pcref')
        e(f'v_lshlrev_b32 v1, 6, v1')
        e(f'v_add_u32 v1, v1, v0')
        e(f'v_lshlrev_b32 v1, 7, v1')
        e(f'v_min_u32 v1, L_end-L_pcref, v1')
        e(f'global_load_dword v31, v1, s[28:29]')

def emit_g1_decode(e):
    e(f's_and_b32 s{S_T0}, s2, 7')
    e(f's_lshr_b32 s{S_T1}, s2, 3')
    e(f's_lshr_b32 s{S_R}, s{S_T0}, 2')
    e(f's_lshl_b32 s{S_R}, s{S_R}, 2')
    e(f's_lshr_b32 s{S_T2}, s{S_T1}, 3')
    e(f's_add_u32 s{S_R}, s{S_R}, s{S_T2}')
    e(f's_and_b32 s{S_T0}, s{S_T0}, 3')
    e(f's_and_b32 s{S_T1}, s{S_T1}, 7')
    e(f's_lshl_b32 s{S_PROD}, s{S_T0}, 1')
    e(f's_lshr_b32 s{S_T2}, s{S_T1}, 2')
    e(f's_add_u32 s{S_PROD}, s{S_PROD}, s{S_T2}')
    e(f's_add_u32 s{S_PROD}, s{S_PROD}, 1')
    e(f's_and_b32 s{S_T2}, s{S_T1}, 3')
    e(f's_cmp_eq_u32 s{S_T2}, 0')
    e(f's_cselect_b32 s{S_PROD}, s{S_PROD}, 0')
    e(f's_lshl_b32 s{S_I}, s{S_T0}, 2')
    e(f's_add_u32 s{S_I}, s{S_I}, s{S_T1}')
    e(f's_mov_b32 s{S_TYPE}, 0')
    e(f's_cmp_lt_u32 s{S_T1}, 4')
    e('s_cbranch_scc1 L_typed')
    e(f's_lshl_b32 s{S_I}, s{S_T0}, 1')
    e(f's_and_b32 s{S_T2}, s{S_T1}, 1')
    e(f's_add_u32 s{S_I}, s{S_I}, s{S_T2}')
    e(f's_mov_b32 s{S_TYPE}, 1')
    e(f's_cmp_lt_u32 s{S_T1}, 6')
    e('s_cbranch_scc1 L_typed')
    e(f's_mov_b32 s{S_TYPE}, 2')
    e.label('L_typed')
    e('s_waitcnt lgkmcnt(0)')

def emit_g1_loader(e, fused):
    vm = VM(e)
    e.label('L_loader')
    e(f's_sub_u32 s{S_W}, s{S_WAVE}, 4')
    e(f's_cmp_eq_u32 s{S_TYPE}, 1')
    e('s_cbranch_scc1 L_ld_b1')
    e(f's_cmp_eq_u32 s{S_TYPE}, 2')
    e('s_cbranch_scc1 L_ld_b2')
    e(f's_lshl_b32 s{S_T0}, s{S_I}, 7')
    e(f's_add_u32 s{S_P0}, s{S_W1}, s{S_T0}'); e(f's_addc_u32 s{S_P0+1}, s{S_W1+1}, 0')
    e(f's_add_u32 s{S_P1}, s{S_W3}, s{S_T0}'); e(f's_addc_u32 s{S_P1+1}, s{S_W3+1}, 0')
    e(f's_lshl_b32 s{S_T0}, s{S_I}, 6')
    e(f's_add_u32 s{S_Q0}, s{S_WQKV}, s{S_T0}'); e(f's_addc_u32 s{S_Q0+1}, s{S_WQKV+1}, 0')
    e(f's_add_u32 s{S_Q1}, s{S_Q0}, 32'); e(f's_addc_u32 s{S_Q1+1}, s{S_Q0+1}, 0')
    e(f's_mov_b32 s{S_PM}, 3584'); e(f's_mov_b32 s{S_PQ}, 3072')
    e('s_branch L_ld_go')
    e.label('L_ld_b1')
    e(f's_lshl_b32 s{S_T0}, s{S_I}, 7')
    e(f's_add_u32 s{S_T0}, s{S_T0}, 1024')
    e(f's_add_u32 s{S_P0}, s{S_WQKV}, s{S_T0}'); e(f's_addc_u32 s{S_P0+1}, s{S_WQKV+1}, 0')
    e(f's_add_u32 s{S_P1}, s{S_P0}, 1024'); e(f's_addc_u32 s{S_P1+1}, s{S_P0+1}, 0')
    e(f's_lshl_b32 s{S_T0}, s{S_I}, 5')
    e(f's_add_u32 s{S_T0}, s{S_T0}, 3328')
    e(f's_add_u32 s{S_Q0}, s{S_W1}, s{S_T0}'); e(f's_addc_u32 s{S_Q0+1}, s{S_W1+1}, 0')
    e(f's_add_u32 s{S_Q1}, s{S_W3}, s{S_T0}'); e(f's_addc_u32 s{S_Q1+1}, s{S_W3+1}, 0')
    e(f's_mov_b32 s{S_PM}, 3072'); e(f's_mov_b32 s{S_PQ}, 3584')
    e('s_branch L_ld_go')
    e.label('L_ld_b2')
    e(f's_mul_i32 s{S_T0}, s{S_I}, 160')
    e(f's_add_u32 s{S_T0}, s{S_T0}, 2048')
    e(f's_add_u32 s{S_P0}, s{S_W1}, s{S_T0}'); e(f's_addc_u32 s{S_P0+1}, s{S_W1+1}, 0')
    e(f's_add_u32 s{S_P1}, s{S_W3}, s{S_T0}'); e(f's_addc_u32 s{S_P1+1}, s{S_W3+1}, 0')
    e(f's_add_u32 s{S_Q0}, s{S_P0}, 128'); e(f's_addc_u32 s{S_Q0+1}, s{S_P0+1}, 0')
    e(f's_add_u32 s{S_Q1}, s{S_P1}, 128'); e(f's_addc_u32 s{S_Q1+1}, s{S_P1+1}, 0')
    e(f's_mov_b32 s{S_PM}, 3584'); e(f's_mov_b32 s{S_PQ}, 3584')
    e.label('L_ld_go')
    e(f's_mov_b32 s{S_SRDX}, s{S_X}'); e(f's_mov_b32 s{S_SRDX+1}, s{S_X+1}')
    e(f's_mov_b32 s{S_SRDX+2}, 0x200000'); e(f's_mov_b32 s{S_SRDX+3}, 0x00020000')
    VX0, VX1 = 2, 3
    WA = 4
    WI = 14
    VL = 20
    VC = 23
    SA = 26
    QA = 34
    CA = 36
    ONES = 52
    XR = 56
    WR = 88
    T = 112
    e(f'v_lshrrev_b32 v{T}, 3, v0')
    e(f'v_lshlrev_b32 v{T}, 10, v{T}')
    e(f'v_lshrrev_b32 v{T+1}, 4, v0')
    e(f'v_and_b32 v{T+2}, 7, v0')
    e(f'v_xor_b32 v{T+3}, v{T+2}, v{T+1}')
    e(f'v_lshl_add_u32 v{VX0}, v{T+3}, 4, v{T}')
    e(f'v_xor_b32 v{T+3}, 4, v{T+3}')
    e(f'v_lshl_add_u32 v{VX1}, v{T+3}, 4, v{T}')
    e(f's_lshl_b32 s{S_XROW}, s{S_R}, 18')
    e(f's_lshl_b32 s{S_T0}, s{S_W}, 16')
    e(f's_add_u32 s{S_XROW}, s{S_XROW}, s{S_T0}')
    e(f's_lshl_b32 s{S_LDSX}, s{S_W}, 13')
    e(f's_mul_i32 s{S_LDSW}, s{S_W}, 5120')
    e(f's_add_u32 s{S_LDSW}, s{S_LDSW}, {WOFF}')

    e('s_cmp_lg_u32 s2, 0')
    e('s_cbranch_scc1 L_nozero')
    e(f's_add_u32 s{S_KVB}, s{S_WS}, {WS_KV}'); e(f's_addc_u32 s{S_KVB+1}, s{S_WS+1}, 0')
    e(f'v_mov_b32 v{T+4}, 0'); e(f'v_mov_b32 v{T+5}, 0'); e(f'v_mov_b32 v{T+6}, 0'); e(f'v_mov_b32 v{T+7}, 0')
    nz = (ZERO_BYTES + 4095) // 4096
    e(f'v_lshlrev_b32 v{T+8}, 4, v0')
    e(f's_mul_i32 s{S_T0}, s{S_W}, {nz*1024}')
    e(f'v_add_u32 v{T+8}, s{S_T0}, v{T+8}')
    for z in range(nz):
        if z and z % 4 == 0:
            e(f'v_add_u32 v{T+8}, 4096, v{T+8}')
        e(f'global_store_dwordx4 v{T+8}, v[{T+4}:{T+7}], {pair(S_KVB)} offset:{(z%4)*1024} sc1')
    e.label('L_nozero')

    def x_dma(slab, i):
        st = (slab % 3) * STAGE
        e(f's_add_u32 m0, s{S_LDSX}, {st + 1024*i}')
        e(f's_add_u32 s{S_T0}, s{S_XROW}, {8192*i + 128*slab}')
        e(f'buffer_load_dwordx4 v{VX0 + (i&1)}, s[{S_SRDX}:{S_SRDX+3}], s{S_T0} offen lds')
        vm.issue(('x', slab))
    def w_dma(slab, ii):
        st = (slab % 3) * STAGE
        e(f's_add_u32 m0, s{S_LDSW}, {st + 1024*ii}')
        e('s_nop 0')
        e(f'global_load_lds_dwordx4 v[{WA+2*ii}:{WA+2*ii+1}], off')
        vm.issue(('w', slab))
    def w_adv(ii):
        e(f'v_add_co_u32 v{WA+2*ii}, vcc, v{WA+2*ii}, v{WI+ii}')
        e(f'v_addc_co_u32 v{WA+2*ii+1}, vcc, 0, v{WA+2*ii+1}, vcc')

    for i in range(8): x_dma(0, i)
    e(f'v_mov_b32 v{T+8}, s{S_P0}'); e(f'v_mov_b32 v{T+9}, s{S_P0+1}')
    e(f'v_mov_b32 v{T+10}, s{S_P1}'); e(f'v_mov_b32 v{T+11}, s{S_P1+1}')
    e(f'v_mov_b32 v{T+12}, s{S_Q0}'); e(f'v_mov_b32 v{T+13}, s{S_Q0+1}')
    e(f'v_mov_b32 v{T+14}, s{S_Q1}'); e(f'v_mov_b32 v{T+15}, s{S_Q1+1}')
    e(f'v_mov_b32 v{T+16}, s{S_PM}'); e(f'v_mov_b32 v{T+17}, s{S_PQ}')
    e(f's_lshl_b32 s{S_T1}, s{S_W}, 4')
    e(f's_movk_i32 s{S_T2}, 3277')
    for ii in range(5):
        a = WA + 2*ii
        e(f'v_add_u32 v{T}, {64*ii}, v0')
        e(f'v_mul_u32_u24 v{T+1}, s{S_T2}, v{T}')
        e(f'v_lshrrev_b32 v{T+1}, 16, v{T+1}')
        e(f'v_mul_u32_u24 v{T+2}, 20, v{T+1}')
        e(f'v_sub_u32 v{T+2}, v{T}, v{T+2}')
        e(f'v_cmp_le_u32 s[{S_EX}:{S_EX+1}], 10, v{T+2}')
        e(f'v_subrev_u32 v{T+3}, 10, v{T+2}')
        e(f'v_add_u32 v{T+1}, s{S_T1}, v{T+1}')
        e(f'v_cndmask_b32 v{T+2}, v{T+2}, v{T+3}, s[{S_EX}:{S_EX+1}]')
        e(f'v_cndmask_b32 v{T+3}, v{T+8}, v{T+10}, s[{S_EX}:{S_EX+1}]')
        e(f'v_cmp_le_u32 vcc, 8, v{T+2}')
        e(f'v_cndmask_b32 v{T+4}, v{T+9}, v{T+11}, s[{S_EX}:{S_EX+1}]')
        e(f'v_cndmask_b32 v{T+5}, v{T+12}, v{T+14}, s[{S_EX}:{S_EX+1}]')
        e(f'v_cndmask_b32 v{T+6}, v{T+13}, v{T+15}, s[{S_EX}:{S_EX+1}]')
        e(f'v_subrev_u32 v{T+7}, 8, v{T+2}')
        e(f'v_cndmask_b32 v{T+3}, v{T+3}, v{T+5}, vcc')
        e(f'v_cndmask_b32 v{T+4}, v{T+4}, v{T+6}, vcc')
        e(f'v_cndmask_b32 v{T+5}, v{T+16}, v{T+17}, vcc')
        e(f'v_cndmask_b32 v{T+6}, v{T+2}, v{T+7}, vcc')
        e(f'v_lshlrev_b32 v{T+6}, 4, v{T+6}')
        e(f'v_mad_u32_u24 v{T+6}, v{T+1}, v{T+5}, v{T+6}')
        e(f'v_add_co_u32 v{a}, vcc, v{T+3}, v{T+6}')
        e(f'v_lshlrev_b32 v{WI+ii}, 6, v{T+5}')
        e(f'v_addc_co_u32 v{a+1}, vcc, 0, v{T+4}, vcc')
        w_dma(0, ii)
    for ii in range(5): w_adv(ii)
    vm.tags[('slab', 0)] = vm.n
    for ii in range(5): w_dma(1, ii)
    vm.tags[('slab', 1)] = vm.n
    for ii in range(5): w_adv(ii)
    if 'lprio' in EXP: e('s_setprio 3')

    for s in range(8):
        if 'lit' in EXP and s == 4: stamp(e, 2)
        if 'lit' in EXP and s == 5: stamp(e, 5)
        vm.wait(('slab', s))
        if s == 0 and 'lit' not in EXP: stamp(e, 2)
        if 'lit' in EXP and s == 4: stamp(e, 3)
        if 'lit' in EXP and s == 5: stamp(e, 6)
        e('s_barrier')
        if 'lit' in EXP and s == 4: stamp(e, 4)
        if s == 0:
            e('s_cmp_lg_u32 s2, 0'); e('s_cbranch_scc1 L_nogate')
            e(f's_cmp_lg_u32 s{S_W}, 0'); e('s_cbranch_scc1 L_nogate')
            e(f'v_mov_b32 v{T}, 0'); e(f'v_mov_b32 v{T+1}, 1')
            e(f's_mov_b64 s[{S_EX}:{S_EX+1}], exec'); e('s_mov_b64 exec, 1')
            e(f'global_store_dword v{T}, v{T+1}, {pair(S_DBG)} sc1')
            e(f's_mov_b64 exec, s[{S_EX}:{S_EX+1}]')
            e.label('L_nogate')
        if s == 1:
            e(f's_cmp_lg_u32 s{S_W}, 0'); e('s_cbranch_scc1 L_nors')
            e(f's_cmp_eq_u32 s{S_PROD}, 0'); e('s_cbranch_scc1 L_nors')
            e(f's_lshl_b32 s{S_T0}, s{S_R}, 2')
            e(f's_add_u32 s{S_T0}, s{S_T0}, 8')
            e(f'v_mov_b32 v{T}, s{S_T0}'); e(f'v_mov_b32 v{T+1}, 1')
            e(f's_mov_b64 s[{S_EX}:{S_EX+1}], exec'); e('s_mov_b64 exec, 1')
            e(f'global_atomic_add v{T}, v{T+1}, {pair(S_DBG)}')
            e(f's_mov_b64 exec, s[{S_EX}:{S_EX+1}]')
            e.label('L_nors')
        if s == 6:
            e(f's_cmp_eq_u32 s{S_W}, 1'); e('s_cbranch_scc1 L_rs_fetch')
            e(f's_cmp_lg_u32 s{S_W}, 0'); e('s_cbranch_scc1 L_rs_done')
            poll(e, 'gate', S_DBG, None, 0, 1, T)
            e('s_branch L_rs_done')
            e.label('L_rs_fetch')
            e(f's_lshl_b32 s{S_T1}, s{S_R}, 2')
            e(f's_add_u32 s{S_T1}, s{S_T1}, 8')
            poll(e, 'rs', S_DBG, S_T1, 0, 8, T)
            e(f's_lshl_b32 s{S_T0}, s{S_R}, 11')
            e(f's_add_u32 s{S_T0}, s{S_T0}, {WS_RS}')
            e(f's_add_u32 s{S_KVB}, s{S_WS}, s{S_T0}'); e(f's_addc_u32 s{S_KVB+1}, s{S_WS+1}, 0')
            e(f'v_lshlrev_b32 v{T}, 4, v0')
            e(f'global_load_dwordx4 v[{T+4}:{T+7}], v{T}, {pair(S_KVB)} sc1')
            e(f'global_load_dwordx4 v[{T+8}:{T+11}], v{T}, {pair(S_KVB)} offset:1024 sc1')
            e(f'v_add_u32 v{T}, {ROWSTAT}, v{T}')
            e('s_waitcnt vmcnt(0)')
            e(f'ds_write_b128 v{T}, v[{T+4}:{T+7}]')
            e(f'ds_write_b128 v{T}, v[{T+8}:{T+11}] offset:1024')
            e.label('L_rs_done')
        if fused and s >= 6:
            if s == 6:
                emit_g2_decode(e)
                emit_w2_voff(e, VX0, T)
                e(f's_mov_b32 s{S_T3}, s{S_W}')
            else:
                e(f's_add_u32 s{S_T3}, s{S_W}, 4')
            e(f's_mov_b32 s{S_KAPM}, s{S_T3}')
            emit_w2_rows(e, S_KAPM)
            for k in range(6): w2_step_dma(e, VX0, k, S_W2ROW, S_WOROW, S_RA, 2048*k); vm.issue(); vm.issue()
        nxt = s + 2 if s <= 5 else None
        if nxt is not None and not ('nodma' in EXP and s >= 1):
            for i in range(8): x_dma(nxt, i)
            for ii in range(5):
                w_dma(nxt, ii); w_adv(ii)
        if nxt is not None: vm.tags[('slab', nxt)] = vm.n
    e('s_waitcnt lgkmcnt(0)')
    e('s_barrier')
    if 'lit' not in EXP: stamp(e, 3)

def poll(e, name, sbase, soff, imm, target, T):
    if soff is None: e(f'v_mov_b32 v{T}, 0')
    else: e(f'v_mov_b32 v{T}, s{soff}')
    e(f's_mov_b32 s{S_T2}, 0')
    e.label(f'L_poll_{name}')
    e(f'global_load_dword v{T+1}, v{T}, {pair(sbase)} offset:{imm} sc1')
    e('s_waitcnt vmcnt(0)')
    e(f'v_readfirstlane_b32 s{S_T3}, v{T+1}')
    e(f's_cmp_ge_u32 s{S_T3}, {target}')
    e(f's_cbranch_scc1 L_pollok_{name}')
    e(f's_add_u32 s{S_T2}, s{S_T2}, 1')
    e(f's_cmp_lt_u32 s{S_T2}, 400000')
    e('s_sleep 1')
    e(f's_cbranch_scc1 L_poll_{name}')
    e.label(f'L_pollok_{name}')

ACC = 96
FR = [40, 68]
XA = 32
WAD = 36
def acc(u, rt): return ACC + (u*2 + rt)*16

def emit_g1_compute(e):
    e.label('L_compute')
    e(f's_mov_b32 s{S_W}, s{S_WAVE}')
    T = 2
    e(f's_cmp_eq_u32 s{S_PROD}, 0')
    e('s_cbranch_scc1 L_c_nors1')
    e(f's_lshl_b32 s{S_T0}, s{S_R}, 3')
    e(f's_add_u32 s{S_T0}, s{S_T0}, s{S_PROD}')
    e(f's_sub_u32 s{S_T0}, s{S_T0}, 1')
    e(f's_lshl_b32 s{S_T0}, s{S_T0}, 2')
    e(f's_add_u32 s{S_HEAD}, s{S_T0}, s{S_W}')
    e(f's_lshl_b32 s{S_T1}, s{S_HEAD}, 13')
    e(f's_add_u32 s{S_KVB}, s{S_X}, s{S_T1}'); e(f's_addc_u32 s{S_KVB+1}, s{S_X+1}, 0')
    e(f'v_lshrrev_b32 v{T}, 3, v0')
    e(f'v_lshlrev_b32 v{T}, 10, v{T}')
    e(f'v_and_b32 v{T+1}, 7, v0')
    e(f'v_lshl_add_u32 v{T}, v{T+1}, 4, v{T}')
    for i in range(8):
        e(f'global_load_dwordx4 v[{40+4*i}:{43+4*i}], v{T}, {pair(S_KVB)} offset:{128*i}')
    e.label('L_c_nors1')
    e(f'v_and_b32 v{T}, 31, v0')
    e(f'v_lshrrev_b32 v{T+1}, 5, v0')
    e(f'v_lshrrev_b32 v{T+2}, 1, v{T}')
    e(f'v_and_b32 v{T+2}, 7, v{T+2}')
    e(f'v_xor_b32 v{T+2}, v{T+2}, v{T+1}')
    e(f'v_lshlrev_b32 v{T+2}, 4, v{T+2}')
    e(f'v_lshl_add_u32 v{T+2}, v{T}, 7, v{T+2}')
    e(f's_lshl_b32 s{S_T0}, s{S_W}, 13')
    e(f'v_add_u32 v{XA}, s{S_T0}, v{T+2}')
    for t in range(1, 4):
        e(f'v_xor_b32 v{XA+t}, {t<<5}, v{XA}')
    e(f'v_bfe_u32 v{T}, v0, 4, 1')
    e(f'v_mul_u32_u24 v{T}, 160, v{T}')
    e(f'v_lshrrev_b32 v{T+1}, 5, v0')
    e(f'v_lshlrev_b32 v{T+1}, 3, v{T+1}')
    e(f'v_bfe_u32 v{T+2}, v0, 2, 2')
    e(f'v_add_u32 v{T+1}, v{T+1}, v{T+2}')
    e(f'v_mul_u32_u24 v{T+1}, 320, v{T+1}')
    e(f'v_add_u32 v{T}, v{T}, v{T+1}')
    e(f'v_and_b32 v{T+1}, 1, v0')
    e(f'v_lshlrev_b32 v{T+1}, 4, v{T+1}')
    e(f'v_bfe_u32 v{T+2}, v0, 1, 1')
    e(f'v_lshl_add_u32 v{T+1}, v{T+2}, 3, v{T+1}')
    e(f'v_add3_u32 v{WAD}, v{T}, v{T+1}, v0') if False else None
    e(f'v_add_u32 v{T}, v{T}, v{T+1}')
    e(f'v_add_u32 v{WAD}, {WOFF}, v{T}')
    for k in range(160): e(f'v_mov_b32 v{ACC+k}, 0')
    e(f's_cmp_eq_u32 s{S_PROD}, 0')
    e('s_cbranch_scc1 L_c_nors2')
    e('v_mov_b32 v8, 0'); e('v_mov_b32 v9, 0'); e('v_mov_b32 v10, 0'); e('v_mov_b32 v11, 0')
    e('v_mov_b32 v12, 0x3f803f80')
    e('s_waitcnt vmcnt(0)')
    for k in range(32):
        e(f'v_dot2_f32_bf16 v{8+(k&1)}, v{40+k}, v12, v{8+(k&1)}')
        e(f'v_dot2_f32_bf16 v{10+(k&1)}, v{40+k}, v{40+k}, v{10+(k&1)}')
    e('v_add_f32 v8, v8, v9'); e('v_add_f32 v10, v10, v11')
    for m in ('quad_perm:[1,0,3,2]', 'quad_perm:[2,3,0,1]', 'row_half_mirror'):
        e(f'v_add_f32_dpp v8, v8, v8 {m} row_mask:0xf bank_mask:0xf')
        e(f'v_add_f32_dpp v10, v10, v10 {m} row_mask:0xf bank_mask:0xf')
    e(f's_mov_b32 s{S_T2}, {fhex(1.0/512)}')
    e(f's_mov_b32 s{S_T3}, {fhex(1e-5)}')
    e(f'v_mul_f32 v8, s{S_T2}, v8')
    e(f'v_mul_f32 v10, s{S_T2}, v10')
    e('v_fma_f32 v10, -v8, v8, v10')
    e('v_max_f32 v10, 0, v10')
    e(f'v_add_f32 v10, s{S_T3}, v10')
    e('v_rsq_f32 v9, v10')
    e(f's_lshl_b32 s{S_T1}, s{S_HEAD}, 6')
    e(f's_add_u32 s{S_T1}, s{S_T1}, {WS_RS}')
    e(f's_add_u32 s{S_KVB}, s{S_WS}, s{S_T1}'); e(f's_addc_u32 s{S_KVB+1}, s{S_WS+1}, 0')
    e('v_and_b32 v10, 7, v0')
    e('v_cmp_eq_u32 vcc, 0, v10')
    e('v_lshrrev_b32 v10, 3, v0')
    e('v_lshlrev_b32 v10, 3, v10')
    e(f's_and_saveexec_b64 s[{S_EX}:{S_EX+1}], vcc')
    e(f'global_store_dwordx2 v10, v[8:9], {pair(S_KVB)} sc1')
    e(f's_mov_b64 exec, s[{S_EX}:{S_EX+1}]')
    e.label('L_c_nors2')

    e(f's_mov_b32 s{S_SRDX}, s{S_X}'); e(f's_mov_b32 s{S_SRDX+1}, s{S_X+1}')
    e(f's_mov_b32 s{S_SRDX+2}, 0x200000'); e(f's_mov_b32 s{S_SRDX+3}, 0x00020000')
    e('v_lshrrev_b32 v14, 3, v0')
    e('v_lshlrev_b32 v14, 10, v14')
    e('v_lshrrev_b32 v15, 4, v0')
    e('v_and_b32 v16, 7, v0')
    e('v_xor_b32 v16, v16, v15')
    e('v_lshl_add_u32 v17, v16, 4, v14')
    e('v_xor_b32 v16, 4, v16')
    e('v_lshl_add_u32 v18, v16, 4, v14')
    e(f's_lshl_b32 s{S_XROW}, s{S_R}, 18')
    e(f's_lshl_b32 s{S_T0}, s{S_W}, 16')
    e(f's_add_u32 s{S_XROW}, s{S_XROW}, s{S_T0}')
    e(f's_lshl_b32 s{S_LDSX}, s{S_W}, 13')
    for i in range(8):
        e(f's_add_u32 m0, s{S_LDSX}, {STAGE + 1024*i}')
        e(f's_add_u32 s{S_T0}, s{S_XROW}, {8192*i + 128}')
        e(f'buffer_load_dwordx4 v{17 + (i&1)}, s[{S_SRDX}:{S_SRDX+3}], s{S_T0} offen lds')

    def reads(t, set_):
        f = FR[set_]
        r = []
        for rt in range(2):
            r.append(f'ds_read_b128 v[{f+4*rt}:{f+4*rt+3}], v{XA+t} offset:{4096*rt}')
        for u in range(5):
            for j in range(2):
                off = (16*t + 4*j)*320 + 32*u
                r.append(f'ds_read_b64_tr_b16 v[{f+8+4*u+2*j}:{f+8+4*u+2*j+1}], v{WAD} offset:{off}')
        order = [2, 3, 0, 1] + list(range(4, 12))
        return [r[i] for i in order]
    def mfmas(set_):
        f = FR[set_]
        m = []
        for u in range(5):
            for rt in range(2):
                a = acc(u, rt)
                m.append(f'v_mfma_f32_32x32x16_bf16 v[{a}:{a+15}], v[{f+8+4*u}:{f+8+4*u+3}], v[{f+4*rt}:{f+4*rt+3}], v[{a}:{a+15}]')
        return m
    RPG = 3 if 'rpg3' in EXP else 2
    CSL, CSH, CS4L, CS4H, CT = 20, 21, 22, 23, 24
    def cs_ops(set_, t, w):
        f = FR[set_]
        ops = []
        units = [(w, CSL, CSH)] + ([(4, CS4L, CS4H)] if t == w else [])
        n = 0
        for (u, aL, aH) in units:
            for d in range(4):
                r = f + 8 + 4*u + d
                t0 = CT + 2*(n % 3); n += 1
                ops += [f'v_lshlrev_b32 v{t0}, 16, v{r}', f'v_and_b32 v{t0+1}, s{S_MASKH}, v{r}',
                        f'v_add_f32 v{aL}, v{aL}, v{t0}', f'v_add_f32 v{aH}, v{aH}, v{t0+1}']
        return ops
    def step(rd, mm, valu=(), extra=None, skip_first=0):
        ri = 0; vi = 0
        valu = list(valu)
        ng = len(mm)
        nread_gaps = (len(rd) + RPG - 1) // RPG
        quota = [0]*ng
        rem = len(valu)
        g = ng - 1
        while rem > 0:
            progressed = False
            for cap in range(1, 9):
                for gi in reversed(range(ng - 1)):
                    lim = cap - (1 if gi < nread_gaps else 0)
                    if rem > 0 and quota[gi] < lim:
                        quota[gi] += 1; rem -= 1; progressed = True
                if rem == 0: break
            assert progressed
        for k, m in enumerate(mm):
            if k >= skip_first: e(m)
            for _ in range(RPG):
                if ri < len(rd): e(rd[ri]); ri += 1
            for _ in range(quota[k]):
                e(valu[vi]); vi += 1
            if extra and k in extra:
                for x_ in extra[k]: e(x_)
        assert ri == len(rd) and vi == len(valu)

    for k in range(4): e(f'v_mov_b32 v{CSL+k}, 0')
    e(f's_mov_b32 s{S_MASKH}, 0xffff0000')
    if 'prio' in EXP: e('s_setprio 3')
    e('s_barrier')
    stamp(e, 2)
    for r_ in reads(0, 0): e(r_)
    e(f's_mov_b32 s{S_SLAB}, 0')
    e(f's_mov_b32 s{S_T3}, 0')
    for w in range(1, 4):
        e(f's_cmp_eq_u32 s{S_W}, {w}')
        e(f's_cbranch_scc1 L_cloop{w}')
    for w in range(4):
        cs = (lambda set_, t: cs_ops(set_, t, w)) if 'nocolsum' not in EXP else (lambda set_, t: [])
        e.label(f'L_cloop{w}')
        for t in range(2):
            e('s_waitcnt lgkmcnt(0)')
            step(reads(t+1, (t+1) & 1), mfmas(t & 1), cs(t & 1, t))
        e('s_waitcnt lgkmcnt(0)')
        adv = {6: [f's_add_u32 s{S_T3}, s{S_T3}, 1', f's_mov_b32 s{S_DELTA}, {STAGE}', f's_cmp_eq_u32 s{S_T3}, 3',
                   f's_cselect_b32 s{S_DELTA}, {(-2*STAGE) & 0xffffffff}, s{S_DELTA}', f's_cselect_b32 s{S_T3}, 0, s{S_T3}'],
               7: [f'v_add_u32 v{XA+t}, s{S_DELTA}, v{XA+t}' for t in range(3)],
               8: [f'v_add_u32 v{XA+3}, s{S_DELTA}, v{XA+3}', f'v_add_u32 v{WAD}, s{S_DELTA}, v{WAD}',
                   f's_add_u32 s{S_SLAB}, s{S_SLAB}, 1', f's_cmp_eq_u32 s{S_SLAB}, 8']}
        step(reads(3, 1), mfmas(0), cs(0, 2), extra=adv)
        e('s_waitcnt vmcnt(0) lgkmcnt(0)')
        m3 = mfmas(1)
        e(m3[0])
        e(f's_cbranch_scc1 L_clast{w}')
        e('s_barrier')
        step(reads(0, 0), m3, cs(1, 3), skip_first=1)
        e(f's_branch L_cloop{w}')
        e.label(f'L_clast{w}')
        step([], m3, cs(1, 3), skip_first=1)
        if w < 3: e('s_branch L_cdone')
    e.label('L_cdone')
    e(f'v_add_f32 v{CSL}, v{CSL}, v{CSH}')
    e(f'v_add_f32 v{CS4L}, v{CS4L}, v{CS4H}')
    e(f'v_mov_b32 v{CT}, v{CSL}')
    e(f'v_mov_b32 v{CT+1}, v{CS4L}')
    e(f'v_bfe_u32 v{CT+2}, v0, 2, 1')
    e(f'v_lshlrev_b32 v{CT+2}, 3, v{CT+2}')
    e(f'v_permlane32_swap_b32 v{CSL}, v{CT}')
    e(f'v_permlane32_swap_b32 v{CS4L}, v{CT+1}')
    e(f'v_bfe_u32 v{CT+3}, v0, 3, 1')
    e(f'v_lshl_add_u32 v{CT+2}, v{CT+3}, 2, v{CT+2}')
    e(f'v_and_b32 v{CT+3}, 3, v0')
    e(f'v_add_u32 v{CT+2}, v{CT+2}, v{CT+3}')
    e(f'v_bfe_u32 v{CT+3}, v0, 4, 1')
    e(f'v_lshl_add_u32 v{CT+4}, v{CT+3}, 4, v{CT+2}')
    e(f'v_mul_u32_u24 v{CT+3}, 80, v{CT+3}')
    e(f'v_add_u32 v{CT+2}, v{CT+2}, v{CT+3}')
    e(f'v_add_f32 v{CSL}, v{CSL}, v{CT}')
    e(f'v_add_f32 v{CS4L}, v{CS4L}, v{CT+1}')
    e(f's_lshl_b32 s{S_T0}, s{S_W}, 6')
    e(f's_add_u32 s{S_T0}, s{S_T0}, {COLSUM}')
    e(f'v_lshl_add_u32 v{CT+3}, v{CT+2}, 2, s{S_T0}')
    e(f's_lshl_b32 s{S_T0}, s{S_W}, 7')
    e(f's_add_u32 s{S_T0}, s{S_T0}, {COLSUM + 640}')
    e(f'v_lshl_add_u32 v{CT+4}, v{CT+4}, 2, s{S_T0}')
    e(f's_mov_b64 s[{S_EX}:{S_EX+1}], exec')
    e('s_mov_b64 exec, 0xffffffff')
    e(f'ds_write_b32 v{CT+3}, v{CSL}')
    e(f'ds_write_b32 v{CT+4}, v{CS4L}')
    e(f's_mov_b64 exec, s[{S_EX}:{S_EX+1}]')
    e('s_waitcnt lgkmcnt(0)')
    e('s_barrier')
    stamp(e, 3)
    e('s_setprio 0')

def emit_g1_epilogue(e):
    vm = VM(e)
    MU = 2
    RS = 4
    ST = 6
    C1 = 10
    C2 = 12
    KK = 14
    CSA = 16
    VL16 = 17
    CS = 20
    TT = 36
    OUTP = 68
    e(f'v_and_b32 v{ST}, 31, v0')
    e(f'v_lshlrev_b32 v{ST}, 3, v{ST}')
    e(f's_lshl_b32 s{S_T0}, s{S_W}, 9')
    e(f's_add_u32 s{S_T0}, s{S_T0}, {ROWSTAT}')
    e(f'v_add_u32 v{ST}, s{S_T0}, v{ST}')
    e(f'ds_read_b64 v[{TT}:{TT+1}], v{ST}')
    e(f'ds_read_b64 v[{TT+2}:{TT+3}], v{ST} offset:256')
    e(f'v_lshrrev_b32 v{CSA}, 5, v0')
    e(f'v_lshlrev_b32 v{CSA}, 5, v{CSA}')
    e(f'v_add_u32 v{CSA}, {COLSUM}, v{CSA}')
    e(f'v_lshlrev_b32 v{VL16}, 4, v0')
    e('s_waitcnt lgkmcnt(0)')
    for rt in range(2):
        e(f'v_mov_b32 v{MU+rt}, v{TT+2*rt}')
        e(f'v_mov_b32 v{RS+rt}, v{TT+2*rt+1}')
    e(f's_mov_b32 s{S_C1}, {fhex(-LOG2E)}')
    e(f's_mov_b32 s{S_C1+1}, {fhex(LOG2E)}')
    e(f's_mov_b32 s{S_C1+2}, {fhex(LN2)}')
    e(f's_mov_b32 s{S_C1+3}, {fhex(1e-6)}')
    for rt in range(2):
        e(f'v_mul_f32 v{C1+rt}, s{S_C1}, v{RS+rt}')
        e(f'v_mul_f32 v{C2+rt}, s{S_C1+1}, v{RS+rt}')
        e(f'v_mul_f32 v{KK+rt}, v{RS+rt}, v{RS+rt}')
    for rt in range(2):
        e(f'v_rcp_f32 v{KK+rt}, v{KK+rt}')
    e(f'v_mov_b32 v76, s{S_C1+2}')
    e(f'v_mov_b32 v77, s{S_C1+3}')
    e(f's_lshl_b32 s{S_T0}, s{S_R}, 3')
    e(f's_lshl_b32 s{S_T1}, s{S_W}, 1')
    e(f's_add_u32 s{S_T0}, s{S_T0}, s{S_T1}')

    def load_cs(u):
        if u < 4:
            for j in range(4):
                off = ((j >> 1)*5 + u)*64 + (j & 1)*16
                e(f'ds_read_b128 v[{CS+4*j}:{CS+4*j+3}], v{CSA} offset:{off}')
        else:
            def rd(dst, w):
                for j in range(4):
                    off = 640 + 128*w + (j >> 1)*64 + (j & 1)*16
                    e(f'ds_read_b128 v[{dst+4*j}:{dst+4*j+3}], v{CSA} offset:{off}')
            def ad(src):
                for p in range(8):
                    e(f'v_pk_add_f32 v[{CS+2*p}:{CS+2*p+1}], v[{CS+2*p}:{CS+2*p+1}], v[{src+2*p}:{src+2*p+1}]')
            rd(CS, 0); rd(TT, 1); rd(TT+16, 2)
            e('s_waitcnt lgkmcnt(4)')
            ad(TT)
            rd(TT, 3)
            e('s_waitcnt lgkmcnt(4)')
            ad(TT+16)
            e('s_waitcnt lgkmcnt(0)')
            ad(TT)
    def lnfix(a, rt):
        for p in range(8):
            e(f'v_pk_fma_f32 v[{a+2*p}:{a+2*p+1}], v[{CS+2*p}:{CS+2*p+1}], v[{MU+rt}:{MU+rt+1}], v[{a+2*p}:{a+2*p+1}] op_sel_hi:[1,0,1] neg_lo:[0,1,0] neg_hi:[0,1,0]'
              if rt == 0 else
              f'v_pk_fma_f32 v[{a+2*p}:{a+2*p+1}], v[{CS+2*p}:{CS+2*p+1}], v[{MU}:{MU+1}], v[{a+2*p}:{a+2*p+1}] op_sel:[0,1,0] op_sel_hi:[1,1,1] neg_lo:[0,1,0] neg_hi:[0,1,0]')
    def bc(reg, rt):
        return f'v[{reg}:{reg+1}]', rt, rt
    def pk(op, d, s0, s1, s2=None, b1=None, b2=None, neg1=False):
        n = 3 if s2 is not None else 2
        sel = [0]*n; selh = [1]*n
        if b1 is not None: sel[1] = b1; selh[1] = b1
        if b2 is not None: sel[2] = b2; selh[2] = b2
        ops = f'v[{d}:{d+1}], v[{s0}:{s0+1}], v[{s1}:{s1+1}]' + (f', v[{s2}:{s2+1}]' if s2 is not None else '')
        mods = ''
        if any(sel): mods += ' op_sel:[' + ','.join(map(str, sel)) + ']'
        if not all(selh): mods += ' op_sel_hi:[' + ','.join(map(str, selh)) + ']'
        if neg1:
            z = ['0']*n; z[1] = '1'
            mods += ' neg_lo:[' + ','.join(z) + '] neg_hi:[' + ','.join(z) + ']'
        e(f'{op} {ops}{mods}')

    def f_unit(u, sbase0, sbase1, imm):
        load_cs(u)
        e('s_waitcnt lgkmcnt(0)')
        for rt in range(2):
            a = acc(u, rt)
            lnfix(a, rt)
            for p in range(4):
                pk('v_pk_mul_f32', TT+2*p, a+2*p, C1, b1=rt)
            for p in range(4):
                pk('v_pk_mul_f32', a+8+2*p, a+2*p, a+8+2*p)
            for k in range(8): e(f'v_exp_f32 v{TT+k}, v{TT+k}')
            for p in range(4):
                pk('v_pk_fma_f32', TT+2*p, TT+2*p, KK, KK, b1=rt, b2=rt)
            for k in range(8): e(f'v_rcp_f32 v{TT+k}, v{TT+k}')
            for p in range(4):
                pk('v_pk_mul_f32', TT+2*p, TT+2*p, a+8+2*p)
            o = OUTP + 4*rt
            for p in range(4):
                e(f'v_cvt_pk_bf16_f32 v{o+p}, v{TT+2*p}, v{TT+2*p+1}')
            sb = sbase0 if rt == 0 else sbase1
            e(f'global_store_dwordx4 v{VL16}, v[{o}:{o+3}], {pair(sb)} offset:{imm} sc1')
            vm.issue()
    def phi8(a, rt, o):
        for p in range(4):
            pk('v_pk_mul_f32', a+2*p, a+2*p, C2, b1=rt)
        for k in range(8): e(f'v_min_f32 v{TT+k}, 0, v{a+k}')
        for p in range(4):
            pk('v_pk_add_f32', a+2*p, a+2*p, TT+2*p, neg1=True)
        for k in range(8): e(f'v_exp_f32 v{TT+k}, v{TT+k}')
        for p in range(4):
            pk('v_pk_fma_f32', a+2*p, a+2*p, 76, 76, b1=0, b2=1)
        for p in range(4):
            pk('v_pk_add_f32', a+2*p, a+2*p, TT+2*p)
        for p in range(4):
            e(f'v_cvt_pk_bf16_f32 v{o+p}, v{a+2*p}, v{a+2*p+1}')
    def q_unit(u, sbase0, sbase1):
        load_cs(u)
        e('s_waitcnt lgkmcnt(0)')
        for rt in range(2):
            a = acc(u, rt)
            lnfix(a, rt)
            sb = sbase0 if rt == 0 else sbase1
            for hh in range(2):
                o = OUTP + 4*hh
                phi8(a + 8*hh, rt, o)
                e(f'global_store_dwordx4 v{VL16}, v[{o}:{o+3}], {pair(sb)} offset:{1024*hh} sc1')
                vm.issue()

    def hbase(dst, kappa_s, rt):
        e(f's_add_u32 s{S_T1}, s{S_T0}, {rt}')
        e(f's_mul_i32 s{S_T1}, s{S_T1}, 112')
        e(f's_add_u32 s{S_T1}, s{S_T1}, s{kappa_s}')
        e(f's_lshl_b32 s{S_T1}, s{S_T1}, 10')
        e(f's_add_u32 s{dst}, s{S_WS}, s{S_T1}'); e(f's_addc_u32 s{dst+1}, s{S_WS+1}, 0')

    e(f's_cmp_eq_u32 s{S_TYPE}, 1')
    e('s_cbranch_scc1 L_ep_b1')
    e(f's_lshl_b32 s{S_KAPM}, s{S_I}, 2')
    e(f's_mul_i32 s{S_T1}, s{S_I}, 5')
    e(f's_add_u32 s{S_T1}, s{S_T1}, 64')
    e(f's_cmp_eq_u32 s{S_TYPE}, 2')
    e(f's_cselect_b32 s{S_KAPM}, s{S_T1}, s{S_KAPM}')
    hbase(S_HB0, S_KAPM, 0); hbase(S_HB1, S_KAPM, 1)
    for u in range(4): f_unit(u, S_HB0, S_HB1, 1024*u)
    e(f's_cmp_eq_u32 s{S_TYPE}, 2')
    e('s_cbranch_scc1 L_ep_f4b2')
    for rt in range(2):
        d = S_H40 if rt == 0 else S_H41
        e(f's_add_u32 s{S_T1}, s{S_T0}, {rt}')
        e(f's_lshl_b32 s{S_T1}, s{S_T1}, 5')
        e(f's_lshl_b32 s{S_T2}, s{S_I}, 1')
        e(f's_add_u32 s{S_T1}, s{S_T1}, s{S_T2}')
        e(f's_lshl_b32 s{S_T1}, s{S_T1}, 10')
        e(f's_add_u32 s{S_T1}, s{S_T1}, {WS_PQ}')
        e(f's_add_u32 s{d}, s{S_WS}, s{S_T1}'); e(f's_addc_u32 s{d+1}, s{S_WS+1}, 0')
    q_unit(4, S_H40, S_H41)
    e('s_branch L_ep_done')
    e.label('L_ep_f4b2')
    e(f's_add_u32 s{S_KAP4}, s{S_KAPM}, 4')
    e('s_branch L_ep_f4')
    e.label('L_ep_b1')
    emit_kv_units(e, load_cs, lnfix, phi8, pk, dict(MU=MU, RS=RS, TT=TT, OUTP=OUTP, CS=CS))
    e(f's_add_u32 s{S_KAP4}, s{S_I}, 104')
    e.label('L_ep_f4')
    hbase(S_H40, S_KAP4, 0); hbase(S_H41, S_KAP4, 1)
    f_unit(4, S_H40, S_H41, 0)
    e.label('L_ep_done')

TBUF = STAGE
T_T = TBUF
T_D2 = TBUF + 16384

def emit_kv_units(e, load_cs, lnfix, phi8, pk, R):
    MU, RS, TT, OUTP, CS = R['MU'], R['RS'], R['TT'], R['OUTP'], R['CS']
    TW = 78
    TR0, TR1 = 79, 80
    XF = 84
    ONE = 81
    e(f'v_and_b32 v{TW}, 31, v0')
    e(f'v_bfe_u32 v{TT}, v0, 1, 2')
    e(f'v_lshrrev_b32 v{TT+1}, 5, v0')
    e(f'v_xor_b32 v{TT}, v{TT}, v{TT+1}')
    e(f'v_lshlrev_b32 v{TT}, 4, v{TT}')
    e(f'v_lshl_add_u32 v{TW}, v{TW}, 6, v{TT}')
    e(f's_lshl_b32 s{S_T1}, s{S_W}, 12')
    e(f's_add_u32 s{S_T1}, s{S_T1}, {T_T}')
    e(f'v_add_u32 v{TW}, s{S_T1}, v{TW}')
    e(f'v_bfe_u32 v{TT}, v0, 4, 1')
    e(f'v_lshlrev_b32 v{TT}, 1, v{TT}')
    e(f'v_and_b32 v{TT+1}, 1, v0')
    e(f'v_add_u32 v{TT}, v{TT}, v{TT+1}')
    e(f'v_bfe_u32 v{TT+1}, v0, 3, 1')
    e(f'v_xor_b32 v{TT}, v{TT}, v{TT+1}')
    e(f'v_lshlrev_b32 v{TT}, 4, v{TT}')
    e(f'v_bfe_u32 v{TT+1}, v0, 1, 1')
    e(f'v_lshl_add_u32 v{TT}, v{TT+1}, 3, v{TT}')
    e(f'v_lshrrev_b32 v{TT+1}, 5, v0')
    e(f'v_lshlrev_b32 v{TT+1}, 3, v{TT+1}')
    e(f'v_bfe_u32 v{TT+2}, v0, 2, 2')
    e(f'v_add_u32 v{TT+1}, v{TT+1}, v{TT+2}')
    e(f'v_lshl_add_u32 v{TT}, v{TT+1}, 6, v{TT}')
    e(f'v_add_u32 v{TR0}, s{S_T1}, v{TT}')
    e(f'v_xor_b32 v{TR1}, 32, v{TR0}')
    e(f'v_mov_b32 v{ONE}, 0x3f803f80')
    e(f'v_and_b32 v{TT}, 16, v0')
    e(f'v_cmp_eq_u32 s[{S_MASKK}:{S_MASKK+1}], 0, v{TT}')
    for u in range(4):
        load_cs(u)
        e('s_waitcnt lgkmcnt(0)')
        for rt in range(2):
            a = acc(u, rt)
            lnfix(a, rt)
            phi8(a, rt, OUTP)
            for p in range(4):
                pk('v_pk_mul_f32', a+8+2*p, a+8+2*p, RS, b1=rt)
            for p in range(4):
                e(f'v_cvt_pk_bf16_f32 v{OUTP+4+p}, v{a+8+2*p}, v{a+8+2*p+1}')
            e(f'ds_write_b128 v{TW}, v[{OUTP}:{OUTP+3}] offset:{2048*rt}')
            e(f'v_xor_b32 v{TT}, 32, v{TW}')
            e(f'ds_write_b128 v{TT}, v[{OUTP+4}:{OUTP+7}] offset:{2048*rt}')
        e('s_waitcnt lgkmcnt(0)')
        d2 = acc(u, 0)
        for q in range(4):
            f = XF + 4*(q & 1)
            e(f'ds_read_b64_tr_b16 v[{f}:{f+1}], v{TR0} offset:{1024*q}')
            e(f'ds_read_b64_tr_b16 v[{f+2}:{f+3}], v{TR1} offset:{1024*q + 256}')
            e('s_waitcnt lgkmcnt(0)')
            for k in range(4):
                e(f'v_cndmask_b32 v{92+k}, v{f+k}, v{ONE}, s[{S_MASKK}:{S_MASKK+1}]')
            c = '0' if q == 0 else f'v[{d2}:{d2+15}]'
            e(f'v_mfma_f32_32x32x16_bf16 v[{d2}:{d2+15}], v[{f}:{f+3}], v[92:95], {c}')
    e(f'v_lshlrev_b32 v{TT}, 5, v0')
    e(f's_lshl_b32 s{S_T1}, s{S_W}, 13')
    e(f's_add_u32 s{S_T1}, s{S_T1}, {T_D2}')
    e(f'v_add_u32 v{TT}, s{S_T1}, v{TT}')
    for u in range(4):
        d2 = acc(u, 0)
        e(f'ds_write_b128 v{TT}, v[{d2}:{d2+3}] offset:{2048*u}')
        e(f'ds_write_b128 v{TT}, v[{d2+4}:{d2+7}] offset:{2048*u+16}')

def emit_g1_publish(e, fused):
    T = 36
    e(f's_cmp_lg_u32 s{S_TYPE}, 1')
    e('s_cbranch_scc1 L_pub_nokv')
    e(f's_lshr_b32 s{S_T0}, s{S_WAVE}, 1')
    e(f's_and_b32 s{S_T1}, s{S_WAVE}, 1')
    e(f's_lshl_b32 s{S_T2}, s{S_T0}, 11')
    e(f's_lshl_b32 s{S_T3}, s{S_T1}, 10')
    e(f's_add_u32 s{S_T2}, s{S_T2}, s{S_T3}')
    e(f's_add_u32 s{S_T2}, s{S_T2}, {T_D2 + 512}')
    e(f'v_lshlrev_b32 v{T}, 2, v0')
    e(f'v_add_u32 v{T+1}, s{S_T2}, v{T}')
    for w in range(4):
        e(f'ds_read_b32 v{T+2+w}, v{T+1} offset:{8192*w}')
        e(f'ds_read_b32 v{T+6+w}, v{T+1} offset:{8192*w + 256}')
    e(f'v_lshrrev_b32 v{T+10}, 3, v0')
    e(f'v_lshlrev_b32 v{T+10}, 10, v{T+10}')
    e(f'v_and_b32 v{T+11}, 7, v0')
    e(f'v_lshl_add_u32 v{T+10}, v{T+11}, 2, v{T+10}')
    e(f's_lshl_b32 s{S_T3}, s{S_T0}, 11')
    e(f's_add_u32 s{S_T3}, s{S_T3}, {T_D2}')
    e(f'v_add_u32 v{T+10}, s{S_T3}, v{T+10}')
    e(f'v_and_b32 v{T+10}, 0x3ffff, v{T+10}')
    e(f'v_cmp_gt_u32 vcc, 16, v0')
    e(f's_and_saveexec_b64 s[{S_EX}:{S_EX+1}], vcc')
    for w in range(4):
        e(f'ds_read_b32 v{T+12+w}, v{T+10} offset:{8192*w}')
    e(f's_mov_b64 exec, s[{S_EX}:{S_EX+1}]')
    e(f's_lshl_b32 s{S_T2}, s{S_I}, 2')
    e(f's_add_u32 s{S_T2}, s{S_T2}, s{S_T0}')
    e(f's_mul_i32 s{S_T2}, s{S_T2}, {KV_STRIDE}')
    e(f's_add_u32 s{S_T2}, s{S_T2}, {WS_KV}')
    e(f's_add_u32 s{S_KVB}, s{S_WS}, s{S_T2}'); e(f's_addc_u32 s{S_KVB+1}, s{S_WS+1}, 0')
    e(f's_lshl_b32 s{S_T3}, s{S_T1}, 9')
    e(f'v_add_u32 v{T+1}, s{S_T3}, v{T}')
    e('s_waitcnt lgkmcnt(0)')
    e(f'v_add_f32 v{T+2}, v{T+2}, v{T+3}'); e(f'v_add_f32 v{T+4}, v{T+4}, v{T+5}')
    e(f'v_add_f32 v{T+6}, v{T+6}, v{T+7}'); e(f'v_add_f32 v{T+8}, v{T+8}, v{T+9}')
    e(f'v_add_f32 v{T+12}, v{T+12}, v{T+13}'); e(f'v_add_f32 v{T+14}, v{T+14}, v{T+15}')
    e(f'v_add_f32 v{T+2}, v{T+2}, v{T+4}'); e(f'v_add_f32 v{T+6}, v{T+6}, v{T+8}'); e(f'v_add_f32 v{T+12}, v{T+12}, v{T+14}')
    e(f'global_atomic_add_f32 v{T+1}, v{T+2}, {pair(S_KVB)}')
    e(f'global_atomic_add_f32 v{T+1}, v{T+6}, {pair(S_KVB)} offset:256')
    e(f's_cmp_lg_u32 s{S_T1}, 0')
    e('s_cbranch_scc1 L_pub_noz')
    e(f's_mov_b64 s[{S_EX}:{S_EX+1}], exec')
    e('s_mov_b64 exec, 0xffff')
    e(f'global_atomic_add_f32 v{T}, v{T+12}, {pair(S_KVB)} offset:1024')
    e(f's_mov_b64 exec, s[{S_EX}:{S_EX+1}]')
    e.label('L_pub_noz')
    e.label('L_pub_nokv')


BUF = [0, STAGE, 2*STAGE]
def RA(v): return (BUF[2] + 12288*v) if v < 4 else (BUF[0] + 12288*(v-4))
RB0 = BUF[1]
V_W2V = 1
V_TA0, V_TA1 = 2, 3
V_TB0, V_TB1 = 4, 5
V_L16 = 6
V_H0, V_H1 = 7, 8
V_T = 9
HS = 12
W2R = 120
ACC2 = 192
XRES = 116
def acc2(nt, mt): return ACC2 + (nt*2 + mt)*16

def emit_g2_decode(e):
    e(f's_and_b32 s{S_X8}, s2, 7')
    e(f's_lshr_b32 s{S_T0}, s2, 3')
    e(f's_and_b32 s{S_C2}, s{S_T0}, 7')
    e(f's_lshr_b32 s{S_T0}, s{S_T0}, 3')
    e(f's_lshl_b32 s{S_R2}, s{S_X8}, 2')
    e(f's_add_u32 s{S_R2}, s{S_R2}, s{S_T0}')
    e(f's_mov_b32 s{S_SRDW2}, s{S_W2}'); e(f's_mov_b32 s{S_SRDW2+1}, s{S_W2+1}')
    e(f's_mov_b32 s{S_SRDW2+2}, {1792*1024}'); e(f's_mov_b32 s{S_SRDW2+3}, 0x00020000')
    e(f's_mov_b32 s{S_SRDWO}, s{S_WO}'); e(f's_mov_b32 s{S_SRDWO+1}, s{S_WO+1}')
    e(f's_mov_b32 s{S_SRDWO+2}, {512*1024}'); e(f's_mov_b32 s{S_SRDWO+3}, 0x00020000')

def emit_w2_voff(e, dst, t):
    e(f'v_lshrrev_b32 v{t}, 3, v0')
    e(f'v_lshlrev_b32 v{t}, 10, v{t}')
    e(f'v_bfe_u32 v{t+1}, v0, 4, 1')
    e(f'v_lshlrev_b32 v{t+1}, 2, v{t+1}')
    e(f'v_and_b32 v{dst}, 7, v0')
    e(f'v_xor_b32 v{dst}, v{dst}, v{t+1}')
    e(f'v_lshl_add_u32 v{dst}, v{dst}, 4, v{t}')

def w2_step_dma(e, vreg, sigma, s_w2row, s_worow, s_lds, ldsoff):
    for i in range(2):
        e(f's_add_u32 m0, s{s_lds}, {ldsoff + 1024*i}')
        if sigma < 14:
            e(f's_add_u32 s{S_T0}, s{s_w2row}, {(16*sigma + 8*i)*1024}')
            e(f'buffer_load_dwordx4 v{vreg}, s[{S_SRDW2}:{S_SRDW2+3}], s{S_T0} offen lds')
        else:
            e(f's_add_u32 s{S_T0}, s{s_worow}, {(16*(sigma-14) + 8*i)*1024}')
            e(f'buffer_load_dwordx4 v{vreg}, s[{S_SRDWO}:{S_SRDWO+3}], s{S_T0} offen lds')

S_W2ROW, S_WOROW, S_RA, S_RB = 56, 57, 58, 59
def emit_w2_rows(e, s_v):
    e(f's_mul_i32 s{S_W2ROW}, s{s_v}, {224*1024}')
    e(f's_lshl_b32 s{S_T0}, s{S_C2}, 7')
    e(f's_add_u32 s{S_W2ROW}, s{S_W2ROW}, s{S_T0}')
    e(f's_lshl_b32 s{S_WOROW}, s{s_v}, 16')
    e(f's_add_u32 s{S_WOROW}, s{S_WOROW}, s{S_T0}')
    e(f's_mul_i32 s{S_RA}, s{s_v}, 12288')
    e(f's_add_u32 s{S_T0}, s{S_RA}, {BUF[2]}')
    e(f's_sub_u32 s{S_RA}, s{S_RA}, {4*12288}')
    e(f's_cmp_lt_u32 s{s_v}, 4')
    e(f's_cselect_b32 s{S_RA}, s{S_T0}, s{S_RA}')
    e(f's_mul_i32 s{S_RB}, s{s_v}, 6144')
    e(f's_add_u32 s{S_RB}, s{S_RB}, {RB0}')

def arrive(e, name, s_index_expr_reg, T):
    e(f's_lshl_b32 s{S_T0}, s{s_index_expr_reg}, 8')
    e(f's_add_u32 s{S_T0}, s{S_T0}, {WS_CNT}')
    e(f'v_mov_b32 v{T}, s{S_T0}'); e(f'v_mov_b32 v{T+1}, 1')
    e(f's_mov_b64 s[{S_EX}:{S_EX+1}], exec'); e('s_mov_b64 exec, 1')
    e(f'global_atomic_add v{T}, v{T+1}, {pair(S_WS)}')
    e(f's_mov_b64 exec, s[{S_EX}:{S_EX+1}]')

def emit_g2(e):
    vm = VM(e)
    T = V_T
    e(f's_cmp_lg_u32 s{S_WAVE}, 3')
    e('s_cbranch_scc1 L_g2_noarr')
    arrive(e, 'h', S_R, T)
    e.label('L_g2_noarr')
    e('s_barrier')
    emit_w2_rows(e, S_WAVE)
    emit_w2_voff(e, V_W2V, T)
    for k in range(3): w2_step_dma(e, V_W2V, 6+k, S_W2ROW, S_WOROW, S_RB, 2048*k); vm.issue(); vm.issue(('1b', k))
    e(f'v_lshrrev_b32 v{T}, 5, v0')
    e(f'v_lshlrev_b32 v{T}, 3, v{T}')
    e(f'v_bfe_u32 v{T+1}, v0, 2, 2')
    e(f'v_add_u32 v{T}, v{T}, v{T+1}')
    e(f'v_lshlrev_b32 v{T}, 7, v{T}')
    e(f'v_bfe_u32 v{T+1}, v0, 3, 1')
    e(f'v_lshlrev_b32 v{T+1}, 2, v{T+1}')
    e(f'v_bfe_u32 v{T+2}, v0, 4, 1')
    e(f'v_lshl_add_u32 v{T+1}, v{T+2}, 1, v{T+1}')
    e(f'v_bfe_u32 v{T+2}, v0, 1, 1')
    e(f'v_add_u32 v{T+1}, v{T+1}, v{T+2}')
    e(f'v_lshl_add_u32 v{T}, v{T+1}, 4, v{T}')
    e(f'v_and_b32 v{T+1}, 1, v0')
    e(f'v_lshl_add_u32 v{T}, v{T+1}, 3, v{T}')
    e(f'v_add_u32 v{V_TA0}, s{S_RA}, v{T}')
    e(f'v_add_u32 v{V_TB0}, s{S_RB}, v{T}')
    e(f'v_xor_b32 v{T}, 64, v{T}')
    e(f'v_add_u32 v{V_TA1}, s{S_RA}, v{T}')
    e(f'v_add_u32 v{V_TB1}, s{S_RB}, v{T}')
    e(f'v_lshlrev_b32 v{V_L16}, 4, v0')
    def afrag_reads(dst, in_a, slot):
        r = []
        for nt in range(2):
            a = (V_TA0 if in_a else V_TB0) + nt
            for jj in range(2):
                r.append(f'ds_read_b64_tr_b16 v[{dst+4*nt+2*jj}:{dst+4*nt+2*jj+1}], v{a} offset:{2048*slot + 512*jj}')
        return r
    for sg in range(6):
        for r_ in afrag_reads(W2R + 8*sg, True, sg): e(r_)
    e('s_waitcnt lgkmcnt(0)')
    for k in range(6): w2_step_dma(e, V_W2V, 9+k, S_W2ROW, S_WOROW, S_RA, 2048*k); vm.issue(); vm.issue(('2a', k))
    vm.wait(('1b', 2))
    e('s_barrier')
    e(f's_cmp_lg_u32 s{S_TYPE}, 1')
    e('s_cbranch_scc1 L_g2_nokvarr')
    e(f's_cmp_lg_u32 s{S_WAVE}, 2')
    e('s_cbranch_scc1 L_g2_nokvarr')
    e(f's_mov_b32 s{S_T1}, 8')
    arrive(e, 'kv', S_T1, T)
    e.label('L_g2_nokvarr')
    for k in range(3):
        for r_ in afrag_reads(W2R + 8*(6+k), False, k): e(r_)
    e('s_waitcnt lgkmcnt(0)')
    for k in range(3): w2_step_dma(e, V_W2V, 15+k, S_W2ROW, S_WOROW, S_RB, 2048*k); vm.issue(); vm.issue(('2b', k))
    e(f's_lshl_b32 s{S_T0}, s{S_R2}, 6')
    e(f's_lshl_b32 s{S_T1}, s{S_WAVE}, 3')
    e(f's_add_u32 s{S_T0}, s{S_T0}, s{S_T1}')
    e(f's_lshl_b32 s{S_T0}, s{S_T0}, 10')
    e(f's_lshl_b32 s{S_T1}, s{S_C2}, 7')
    e(f's_add_u32 s{S_HEAD}, s{S_T0}, s{S_T1}')
    e(f'v_lshrrev_b32 v{T}, 3, v0')
    e(f'v_lshlrev_b32 v{T}, 10, v{T}')
    e(f'v_and_b32 v{T+1}, 7, v0')
    e(f'v_lshl_add_u32 v{T}, v{T+1}, 4, v{T}')
    e(f'v_add_u32 v{T}, s{S_HEAD}, v{T}')
    e(f'global_load_dwordx4 v[{XRES}:{XRES+3}], v{T}, {pair(S_X)}'); vm.issue('xres')
    S_HBASE, S_PQBASE = 60, 62
    e(f's_lshl_b32 s{S_T0}, s{S_R2}, 1')
    e(f's_mul_i32 s{S_T1}, s{S_T0}, 112')
    e(f's_mul_i32 s{S_T2}, s{S_WAVE}, 14')
    e(f's_add_u32 s{S_T1}, s{S_T1}, s{S_T2}')
    e(f's_lshl_b32 s{S_T1}, s{S_T1}, 10')
    e(f's_add_u32 s{S_HBASE}, s{S_WS}, s{S_T1}'); e(f's_addc_u32 s{S_HBASE+1}, s{S_WS+1}, 0')
    e(f's_lshl_b32 s{S_T1}, s{S_T0}, 5')
    e(f's_lshl_b32 s{S_T2}, s{S_WAVE}, 2')
    e(f's_add_u32 s{S_T1}, s{S_T1}, s{S_T2}')
    e(f's_lshl_b32 s{S_T1}, s{S_T1}, 10')
    e(f's_add_u32 s{S_T1}, s{S_T1}, {WS_PQ}')
    e(f's_add_u32 s{S_PQBASE}, s{S_WS}, s{S_T1}'); e(f's_addc_u32 s{S_PQBASE+1}, s{S_WS+1}, 0')
    e(f'v_mov_b32 v{V_H0}, v{V_L16}')
    e(f'v_add_u32 v{V_H1}, {112*1024}, v{V_L16}')
    for k in range(64): e(f'v_mov_b32 v{ACC2+k}, 0')
    stamp(e, 5)
    e(f's_cmp_lg_u32 s{S_WAVE}, 7')
    e('s_cbranch_scc1 L_g2_hok')
    e(f's_lshl_b32 s{S_T1}, s{S_X8}, 8')
    e(f's_add_u32 s{S_T1}, s{S_T1}, {WS_CNT}')
    poll(e, 'h', S_WS, S_T1, 0, 32, T)
    e.label('L_g2_hok')
    e('s_barrier')
    stamp(e, 6)
    hoff = [0]
    def h_load(sg, slot):
        grp = sg // 4
        if grp != hoff[0]:
            d = (grp - hoff[0]) * 4096
            e(f'v_add_u32 v{V_H0}, {d}, v{V_H0}'); e(f'v_add_u32 v{V_H1}, {d}, v{V_H1}')
            hoff[0] = grp
        for mt in range(2):
            r = HS + 8*slot + 4*mt
            e(f'global_load_dwordx4 v[{r}:{r+3}], v{V_H0+mt}, {pair(S_HBASE)} offset:{(sg % 4)*1024} sc1')
            vm.issue(('h', sg))
    def pq_load(hd, slot):
        for mt in range(2):
            r = HS + 8*slot + 4*mt
            e(f'global_load_dwordx4 v[{r}:{r+3}], v{10+mt}, {pair(S_PQBASE)} offset:{hd*1024} sc1')
            vm.issue(('pq', hd))
    for sg in range(13): h_load(sg, sg)
    e(f'v_mov_b32 v10, v{V_L16}')
    e(f'v_add_u32 v11, {32*1024}, v{V_L16}')
    def mm(afr, slot):
        for nt in range(2):
            for mt in range(2):
                a = acc2(nt, mt); b = HS + 8*slot + 4*mt
                e(f'v_mfma_f32_32x32x16_bf16 v[{a}:{a+15}], v[{afr+4*nt}:{afr+4*nt+3}], v[{b}:{b+3}], v[{a}:{a+15}]')
    JIT = [HS + 8*5, HS + 8*6]
    def jit_reads(sg):
        dst = JIT[sg & 1]
        return afrag_reads(dst, True, sg - 9) if sg <= 14 else afrag_reads(dst, False, sg - 15)
    for sg in range(9):
        vm.wait(('h', sg))
        mm(W2R + 8*sg, sg)
        if sg == 0: h_load(13, 0)
        elif 1 <= sg <= 4: pq_load(sg - 1, sg)
        if sg == 8:
            for r_ in jit_reads(9): e(r_)
    for sg in range(9, 14):
        vm.wait(('h', sg))
        e('s_waitcnt lgkmcnt(0)')
        slot = sg if sg < 13 else 0
        for r_ in jit_reads(sg + 1): e(r_)
        mm(JIT[sg & 1], slot)
    stamp(e, 7)
    e(f's_cmp_lg_u32 s{S_WAVE}, 7')
    e('s_cbranch_scc1 L_g2_kvok')
    e(f's_mov_b32 s{S_T1}, {WS_CNT + 8*256}')
    poll(e, 'kv', S_WS, S_T1, 0, 64, T)
    e.label('L_g2_kvok')
    e('s_barrier')
    KVRAW = HS + 8*7
    KVF = HS + 8*11
    OD = W2R
    OB = W2R + 32
    e(f'v_lshrrev_b32 v{T}, 5, v0')
    e(f'v_and_b32 v{T+1}, 15, v0')
    e(f'v_lshlrev_b32 v{T+1}, 5, v{T+1}')
    e(f'v_lshl_add_u32 v{T+1}, v{T}, 9, v{T+1}')
    e(f'v_lshlrev_b32 v{T}, 5, v{T}')
    e(f'v_add_u32 v{T}, 1024, v{T}')
    e(f'v_and_b32 v{T+2}, 16, v0')
    e(f'v_cmp_eq_u32 vcc, 0, v{T+2}')
    e(f'v_cndmask_b32 v{T}, v{T+1}, v{T}, vcc')
    e(f's_mul_i32 s{S_T0}, s{S_WAVE}, {4*KV_STRIDE}')
    e(f's_add_u32 s{S_T0}, s{S_T0}, {WS_KV}')
    e(f's_add_u32 s{S_KVB}, s{S_WS}, s{S_T0}'); e(f's_addc_u32 s{S_KVB+1}, s{S_WS+1}, 0')
    for hd in range(4):
        for q in range(2):
            off = hd*KV_STRIDE + 16*q
            e(f'global_load_dwordx4 v[{KVRAW+8*hd+4*q}:{KVRAW+8*hd+4*q+3}], v{T}, {pair(S_KVB)} offset:{off} sc1')
            vm.issue(('kv', hd))
    e(f's_mov_b32 s{S_T2}, {fhex(1e-6)}')
    for hd in range(4):
        sg = 14 + hd
        vm.wait(('kv', hd))
        for p in range(4):
            e(f'v_cvt_pk_bf16_f32 v{KVF+4*hd+p}, v{KVRAW+8*hd+2*p}, v{KVRAW+8*hd+2*p+1}')
        for mt in range(2):
            b = HS + 8*(1+hd) + 4*mt
            d = OD + 16*mt
            e(f'v_mfma_f32_32x32x16_bf16 v[{d}:{d+15}], v[{KVF+4*hd}:{KVF+4*hd+3}], v[{b}:{b+3}], 0')
        e('s_waitcnt lgkmcnt(0)')
        if sg + 1 <= 17:
            for r_ in jit_reads(sg + 1): e(r_)
        for mt in range(2):
            d = OD + 16*mt
            o = OB + 4*mt
            e(f'v_add_f32 v{T}, s{S_T2}, v{d}')
            e(f'v_rcp_f32 v{T}, v{T}')
            for k in range(8): e(f'v_mul_f32 v{d+8+k}, v{T}, v{d+8+k}')
            for p in range(4): e(f'v_cvt_pk_bf16_f32 v{o+p}, v{d+8+2*p}, v{d+8+2*p+1}')
        afr = JIT[sg & 1]
        for nt in range(2):
            for mt in range(2):
                a = acc2(nt, mt); b = OB + 4*mt
                e(f'v_mfma_f32_32x32x16_bf16 v[{a}:{a+15}], v[{afr+4*nt}:{afr+4*nt+3}], v[{b}:{b+3}], v[{a}:{a+15}]')
    stamp(e, 8)
    e('s_waitcnt lgkmcnt(0)')
    e('s_barrier')
    e(f'v_and_b32 v{T}, 31, v0')
    e(f'v_mul_u32_u24 v{T}, 272, v{T}')
    e(f'v_lshrrev_b32 v{T+1}, 5, v0')
    e(f'v_lshl_add_u32 v{T}, v{T+1}, 4, v{T}')
    e(f's_mul_i32 s{S_T0}, s{S_WAVE}, 17408')
    e(f'v_add_u32 v{T}, s{S_T0}, v{T}')
    for nt in range(2):
        for mt in range(2):
            a = acc2(nt, mt)
            for j in range(4):
                e(f'ds_write_b128 v{T}, v[{a+4*j}:{a+4*j+3}] offset:{mt*32*272 + nt*128 + j*32}')
    e(f'v_lshrrev_b32 v{T+1}, 3, v0')
    e(f's_lshl_b32 s{S_T0}, s{S_WAVE}, 3')
    e(f'v_add_u32 v{T+1}, s{S_T0}, v{T+1}')
    e(f'v_mul_u32_u24 v{T+1}, 272, v{T+1}')
    e(f'v_and_b32 v{T+2}, 7, v0')
    e(f'v_lshl_add_u32 v{T+1}, v{T+2}, 5, v{T+1}')
    e(f'v_add_u32 v{T+2}, {4*17408}, v{T+1}')
    e('s_waitcnt lgkmcnt(0)')
    e('s_barrier')
    RD = 12
    for p in range(8):
        a = T+1 if p < 4 else T+2
        for q in range(2):
            e(f'ds_read_b128 v[{RD+8*p+4*q}:{RD+8*p+4*q+3}], v{a} offset:{(p%4)*17408 + 16*q}')
    e(f'v_lshrrev_b32 v{T}, 3, v0')
    e(f'v_lshlrev_b32 v{T}, 10, v{T}')
    e(f'v_and_b32 v1, 7, v0')
    e(f'v_lshl_add_u32 v{T}, v1, 4, v{T}')
    e(f'v_add_u32 v{T}, s{S_HEAD}, v{T}')
    for k in range(4):
        e(f'v_lshlrev_b32 v{100+2*k}, 16, v{XRES+k}')
        e(f'v_and_b32 v{101+2*k}, 0xffff0000, v{XRES+k}')
    for half in range(2):
        e(f's_waitcnt lgkmcnt({8 if half == 0 else 0})')
        for p in range(4*half, 4*half+4):
            for q in range(4):
                e(f'v_pk_add_f32 v[{100+2*q}:{101+2*q}], v[{100+2*q}:{101+2*q}], v[{RD+8*p+2*q}:{RD+8*p+2*q+1}]')
    for q in range(4):
        e(f'v_cvt_pk_bf16_f32 v{108+q}, v{100+2*q}, v{101+2*q}')
    e(f'global_store_dwordx4 v{T}, v[108:111], {pair(S_OUT)}')

def gen_fused():
    e = Emitter()
    emit_common_decode(e)
    emit_g1_decode(e)
    e(f's_cmp_ge_u32 s{S_WAVE}, 4')
    e('s_cbranch_scc1 L_loader')
    emit_g1_compute(e)
    emit_g2_decode(e)
    emit_g1_epilogue(e)
    e('s_waitcnt vmcnt(0) lgkmcnt(0)')
    stamp(e, 4)
    e('s_barrier')
    e('s_branch L_pub')
    emit_g1_loader(e, True)
    e('s_waitcnt vmcnt(0)')
    stamp(e, 4)
    e('s_barrier')
    e.label('L_pub')
    emit_g1_publish(e, True)
    emit_g2(e)
    e('s_waitcnt vmcnt(0)')
    stamp(e, 9)
    stamp(e, 10, real=True)
    stamp_flush(e)
    e.label('L_end')
    e('s_endpgm')
    return pad_hazards(e.lines)

def kernel_desc(name, vg=256, sg=102):
    return f'''.section .rodata,"a"
.p2align 6
.amdhsa_kernel {name}
  .amdhsa_next_free_vgpr {vg}
  .amdhsa_next_free_sgpr {sg}
  .amdhsa_accum_offset {vg}
  .amdhsa_group_segment_fixed_size 0
  .amdhsa_kernarg_size 80
  .amdhsa_user_sgpr_count 2
  .amdhsa_user_sgpr_kernarg_segment_ptr 1
  .amdhsa_system_sgpr_workgroup_id_x 1
  .amdhsa_float_denorm_mode_32 3
.end_amdhsa_kernel
'''

def gen_g1_only():
    e = Emitter()
    emit_common_decode(e)
    emit_g1_decode(e)
    e(f's_cmp_ge_u32 s{S_WAVE}, 4')
    e('s_cbranch_scc1 L_loader')
    emit_g1_compute(e)
    emit_g1_epilogue(e)
    e('s_waitcnt vmcnt(0) lgkmcnt(0)')
    e('s_barrier')
    e('s_branch L_pub')
    emit_g1_loader(e, False)
    e('s_barrier')
    e.label('L_pub')
    emit_g1_publish(e, False)
    e('s_waitcnt vmcnt(0)')
    stamp(e, 9)
    stamp(e, 10, real=True)
    stamp_flush(e)
    e.label('L_end')
    e('s_endpgm')
    return pad_hazards(e.lines)

HEADER = open(__file__.replace('gen.py', 'header.txt')).read() if False else None

def write_file(path, launches, kernels):
    hdr = []
    ref = open('cdna_kernels/' + NAME + '.s.ref').read().split('\n')
    for l in ref:
        if l.startswith(';') and '@launch' not in l: hdr.append(l)
        elif '@launch' in l: pass
        else: break
    out = hdr + launches + ['.amdgcn_target "amdgcn-amd-amdhsa--gfx950"', '.text']
    descs = []
    for name, lines in kernels:
        out += [f'.globl {name}', '.p2align 8', f'.type {name},@function', f'{name}:']
        pre = name[:2]
        out += lines
        descs.append(kernel_desc(name))
    out += descs
    open(path, 'w').write('\n'.join(out) + '\n')

if __name__ == '__main__':
    mode = sys.argv[1]
    if 'stamps' in sys.argv: STAMPS = True
    EXP.update(sys.argv[3:])
    path = sys.argv[2]
    if mode == 'fused':
        write_file(path, [f'; @launch grid=(256,1,1) block=(512,1,1) lds={LDS_TOTAL}'], [(NAME + '_kernel', gen_fused())])
    if mode == 'g1':
        write_file(path, [f'; @launch kernel=g1_kernel grid=(256,1,1) block=(512,1,1) lds={LDS_TOTAL}'], [('g1_kernel', gen_g1_only())])
```

```python
import sys
from asmlib import Emitter, pad_hazards

NAME = 'parallel_sum__linear_attn_block__glu_gated_swiglu__prompt'

STAGE = 53248
WOFF = 32768
STATS = 3 * STAGE
ROWSTAT = STATS
COLSUM = STATS + 2048
LDS_TOTAL = 163840
WS_H = 0
WS_PQ = 0x700000
WS_KV = 0x900000
KV_STRIDE = 1152
WS_RS = 0x920000
WS_HF = WS_KV + 36864
WS_KF = WS_HF + 4096
ZERO_BYTES = 36864 + 4096 + 1024

LOG2E = 1.4426950408889634
LN2 = 0.6931471805599453

import struct
def f2u(x): return struct.unpack('<I', struct.pack('<f', x))[0]
def fhex(x): return '0x%08x' % f2u(x)

class VM:
    def __init__(self, e): self.e = e; self.n = 0; self.tags = {}
    def issue(self, tag=None):
        self.n += 1
        if tag is not None: self.tags[tag] = self.n
    def wait(self, tag):
        k = self.n - self.tags[tag]
        assert 0 <= k <= 63, k
        self.e(f's_waitcnt vmcnt({k})')
    def wait_all(self): self.e('s_waitcnt vmcnt(0)')

S_X, S_WQKV, S_WO, S_W1, S_W3, S_W2, S_OUT, S_DBG, S_WS = 4, 6, 8, 12, 14, 16, 18, 20, 22
S_WAVE = 24; S_R = 25; S_TYPE = 26; S_I = 27
S_P0, S_P1, S_Q0, S_Q1 = 28, 30, 32, 34
S_PM, S_PQ = 36, 37
S_W = 38
S_SRDX = 40
S_T0, S_T1, S_T2, S_T3 = 44, 45, 46, 47
S_LDSX, S_LDSW, S_XROW = 48, 49, 50
S_KAPM, S_KAP4, S_HEAD = 51, 52, 53
S_DELTA = 54; S_SLAB = 55
S_HB0, S_HB1 = 56, 58
S_H40, S_H41 = 60, 62
S_EX = 64
S_KVB = 66
S_CNT = 68
S_MASKK = 70
S_C1 = 72
S_PROD = 78
S_MASKH = 79

S_R2, S_C2, S_X8 = 39, 36, 37
S_SRDW2 = 28; S_SRDWO = 32
NSTAMP = 11
STAMPS = False
EXP = set()
S_ST = 80
WS_STAMP = 0xA00000
def stamp(e, i, real=False):
    if STAMPS:
        e(f's_memrealtime s[{S_ST+2*i}:{S_ST+2*i+1}]' if real else f's_memtime s[{S_ST+2*i}:{S_ST+2*i+1}]')
def stamp_flush(e):
    if not STAMPS: return
    e('s_waitcnt lgkmcnt(0)')
    e(f's_lshl_b32 s{S_T0}, s2, 3')
    e(f's_add_u32 s{S_T0}, s{S_T0}, s{S_WAVE}')
    e(f's_lshl_b32 s{S_T0}, s{S_T0}, 7')
    e(f's_add_u32 s{S_T0}, s{S_T0}, {WS_STAMP}')
    e(f's_add_u32 s{S_T2}, s{S_WS}, s{S_T0}'); e(f's_addc_u32 s{S_T3}, s{S_WS+1}, 0')
    e(f's_mov_b64 s[{S_EX}:{S_EX+1}], exec'); e('s_mov_b64 exec, 1')
    e('v_mov_b32 v1, 0')
    for i in range(NSTAMP):
        e(f'v_mov_b32 v2, s{S_ST+2*i}'); e(f'v_mov_b32 v3, s{S_ST+2*i+1}')
        e(f'global_store_dwordx2 v1, v[2:3], s[{S_T2}:{S_T3}] offset:{8*i}')
        e('s_nop 1')
    e(f's_mov_b64 exec, s[{S_EX}:{S_EX+1}]')

def pair(s): return f's[{s}:{s+1}]'
def vr(a, n=1): return f'v{a}' if n == 1 else f'v[{a}:{a+n-1}]'

def emit_common_decode(e):
    e(f's_load_dwordx16 s[4:19], s[0:1], 0')
    e(f's_load_dwordx4 s[20:23], s[0:1], 64')
    e('s_cmp_ge_u32 s2, 256')
    e('s_cbranch_scc1 L_end')
    e('v_lshrrev_b32 v1, 6, v0')
    e('v_and_b32 v0, 63, v0')
    e(f'v_readfirstlane_b32 s{S_WAVE}, v1')
    stamp(e, 0, real=True)
    stamp(e, 1)
    if 'nopf' not in EXP:
        e('s_getpc_b64 s[28:29]')
        e.label('L_pcref')
        e(f'v_lshlrev_b32 v1, 6, v1')
        e(f'v_add_u32 v1, v1, v0')
        e(f'v_lshlrev_b32 v1, 7, v1')
        e(f'v_min_u32 v1, L_end-L_pcref, v1')
        e(f'global_load_dword v31, v1, s[28:29]')

def emit_g1_decode(e):
    e(f's_and_b32 s{S_T0}, s2, 7')
    e(f's_lshr_b32 s{S_T1}, s2, 3')
    e(f's_lshr_b32 s{S_R}, s{S_T0}, 2')
    e(f's_lshl_b32 s{S_R}, s{S_R}, 2')
    e(f's_lshr_b32 s{S_T2}, s{S_T1}, 3')
    e(f's_add_u32 s{S_R}, s{S_R}, s{S_T2}')
    e(f's_and_b32 s{S_T0}, s{S_T0}, 3')
    e(f's_and_b32 s{S_T1}, s{S_T1}, 7')
    e(f's_lshl_b32 s76, s{S_T0}, 3')
    e(f's_add_u32 s76, s76, s{S_T1}')
    e(f's_lshl_b32 s{S_PROD}, s{S_T0}, 1')
    e(f's_lshr_b32 s{S_T2}, s{S_T1}, 2')
    e(f's_add_u32 s{S_PROD}, s{S_PROD}, s{S_T2}')
    e(f's_add_u32 s{S_PROD}, s{S_PROD}, 1')
    e(f's_and_b32 s{S_T2}, s{S_T1}, 3')
    e(f's_cmp_eq_u32 s{S_T2}, 0')
    e(f's_cselect_b32 s{S_PROD}, s{S_PROD}, 0')
    e(f's_lshl_b32 s{S_I}, s{S_T0}, 2')
    e(f's_add_u32 s{S_I}, s{S_I}, s{S_T1}')
    e(f's_mov_b32 s{S_TYPE}, 0')
    e(f's_cmp_lt_u32 s{S_T1}, 4')
    e('s_cbranch_scc1 L_typed')
    e(f's_lshl_b32 s{S_I}, s{S_T0}, 1')
    e(f's_and_b32 s{S_T2}, s{S_T1}, 1')
    e(f's_add_u32 s{S_I}, s{S_I}, s{S_T2}')
    e(f's_mov_b32 s{S_TYPE}, 1')
    e(f's_cmp_lt_u32 s{S_T1}, 6')
    e('s_cbranch_scc1 L_typed')
    e(f's_mov_b32 s{S_TYPE}, 2')
    e.label('L_typed')
    e('s_waitcnt lgkmcnt(0)')

def emit_g1_loader(e, fused):
    vm = VM(e)
    e.label('L_loader')
    e(f's_sub_u32 s{S_W}, s{S_WAVE}, 4')
    e(f's_cmp_eq_u32 s{S_TYPE}, 1')
    e('s_cbranch_scc1 L_ld_b1')
    e(f's_cmp_eq_u32 s{S_TYPE}, 2')
    e('s_cbranch_scc1 L_ld_b2')
    e(f's_lshl_b32 s{S_T0}, s{S_I}, 7')
    e(f's_add_u32 s{S_P0}, s{S_W1}, s{S_T0}'); e(f's_addc_u32 s{S_P0+1}, s{S_W1+1}, 0')
    e(f's_add_u32 s{S_P1}, s{S_W3}, s{S_T0}'); e(f's_addc_u32 s{S_P1+1}, s{S_W3+1}, 0')
    e(f's_lshl_b32 s{S_T0}, s{S_I}, 6')
    e(f's_add_u32 s{S_Q0}, s{S_WQKV}, s{S_T0}'); e(f's_addc_u32 s{S_Q0+1}, s{S_WQKV+1}, 0')
    e(f's_add_u32 s{S_Q1}, s{S_Q0}, 32'); e(f's_addc_u32 s{S_Q1+1}, s{S_Q0+1}, 0')
    e(f's_mov_b32 s{S_PM}, 3584'); e(f's_mov_b32 s{S_PQ}, 3072')
    e('s_branch L_ld_go')
    e.label('L_ld_b1')
    e(f's_lshl_b32 s{S_T0}, s{S_I}, 7')
    e(f's_add_u32 s{S_T0}, s{S_T0}, 1024')
    e(f's_add_u32 s{S_P0}, s{S_WQKV}, s{S_T0}'); e(f's_addc_u32 s{S_P0+1}, s{S_WQKV+1}, 0')
    e(f's_add_u32 s{S_P1}, s{S_P0}, 1024'); e(f's_addc_u32 s{S_P1+1}, s{S_P0+1}, 0')
    e(f's_lshl_b32 s{S_T0}, s{S_I}, 5')
    e(f's_add_u32 s{S_T0}, s{S_T0}, 3328')
    e(f's_add_u32 s{S_Q0}, s{S_W1}, s{S_T0}'); e(f's_addc_u32 s{S_Q0+1}, s{S_W1+1}, 0')
    e(f's_add_u32 s{S_Q1}, s{S_W3}, s{S_T0}'); e(f's_addc_u32 s{S_Q1+1}, s{S_W3+1}, 0')
    e(f's_mov_b32 s{S_PM}, 3072'); e(f's_mov_b32 s{S_PQ}, 3584')
    e('s_branch L_ld_go')
    e.label('L_ld_b2')
    e(f's_mul_i32 s{S_T0}, s{S_I}, 160')
    e(f's_add_u32 s{S_T0}, s{S_T0}, 2048')
    e(f's_add_u32 s{S_P0}, s{S_W1}, s{S_T0}'); e(f's_addc_u32 s{S_P0+1}, s{S_W1+1}, 0')
    e(f's_add_u32 s{S_P1}, s{S_W3}, s{S_T0}'); e(f's_addc_u32 s{S_P1+1}, s{S_W3+1}, 0')
    e(f's_add_u32 s{S_Q0}, s{S_P0}, 128'); e(f's_addc_u32 s{S_Q0+1}, s{S_P0+1}, 0')
    e(f's_add_u32 s{S_Q1}, s{S_P1}, 128'); e(f's_addc_u32 s{S_Q1+1}, s{S_P1+1}, 0')
    e(f's_mov_b32 s{S_PM}, 3584'); e(f's_mov_b32 s{S_PQ}, 3584')
    e.label('L_ld_go')
    e(f's_mov_b32 s{S_SRDX}, s{S_X}'); e(f's_mov_b32 s{S_SRDX+1}, s{S_X+1}')
    e(f's_mov_b32 s{S_SRDX+2}, 0x200000'); e(f's_mov_b32 s{S_SRDX+3}, 0x00020000')
    VX0, VX1 = 2, 3
    WA = 4
    WI = 14
    VL = 20
    VC = 23
    SA = 26
    QA = 34
    CA = 36
    ONES = 52
    XR = 56
    WR = 88
    T = 112
    e(f'v_lshrrev_b32 v{T}, 3, v0')
    e(f'v_lshlrev_b32 v{T}, 10, v{T}')
    e(f'v_lshrrev_b32 v{T+1}, 4, v0')
    e(f'v_and_b32 v{T+2}, 7, v0')
    e(f'v_xor_b32 v{T+3}, v{T+2}, v{T+1}')
    e(f'v_lshl_add_u32 v{VX0}, v{T+3}, 4, v{T}')
    e(f'v_xor_b32 v{T+3}, 4, v{T+3}')
    e(f'v_lshl_add_u32 v{VX1}, v{T+3}, 4, v{T}')
    e(f's_lshl_b32 s{S_XROW}, s{S_R}, 18')
    e(f's_lshl_b32 s{S_T0}, s{S_W}, 16')
    e(f's_add_u32 s{S_XROW}, s{S_XROW}, s{S_T0}')
    e(f's_lshl_b32 s{S_LDSX}, s{S_W}, 13')
    e(f's_mul_i32 s{S_LDSW}, s{S_W}, 5120')
    e(f's_add_u32 s{S_LDSW}, s{S_LDSW}, {WOFF}')

    e('s_cmp_lg_u32 s2, 0')
    e('s_cbranch_scc1 L_nozero')
    e(f's_add_u32 s{S_KVB}, s{S_WS}, {WS_KV}'); e(f's_addc_u32 s{S_KVB+1}, s{S_WS+1}, 0')
    e(f'v_mov_b32 v{T+4}, 0'); e(f'v_mov_b32 v{T+5}, 0'); e(f'v_mov_b32 v{T+6}, 0'); e(f'v_mov_b32 v{T+7}, 0')
    nz = (ZERO_BYTES + 4095) // 4096
    e(f'v_lshlrev_b32 v{T+8}, 4, v0')
    e(f's_mul_i32 s{S_T0}, s{S_W}, {nz*1024}')
    e(f'v_add_u32 v{T+8}, s{S_T0}, v{T+8}')
    for z in range(nz):
        if z and z % 4 == 0:
            e(f'v_add_u32 v{T+8}, 4096, v{T+8}')
        e(f'global_store_dwordx4 v{T+8}, v[{T+4}:{T+7}], {pair(S_KVB)} offset:{(z%4)*1024} sc1')
    e.label('L_nozero')

    def x_dma(slab, i):
        st = (slab % 3) * STAGE
        e(f's_add_u32 m0, s{S_LDSX}, {st + 1024*i}')
        e(f's_add_u32 s{S_T0}, s{S_XROW}, {8192*i + 128*slab}')
        e(f'buffer_load_dwordx4 v{VX0 + (i&1)}, s[{S_SRDX}:{S_SRDX+3}], s{S_T0} offen lds')
        vm.issue(('x', slab))
    def w_dma(slab, ii):
        st = (slab % 3) * STAGE
        e(f's_add_u32 m0, s{S_LDSW}, {st + 1024*ii}')
        e('s_nop 0')
        e(f'global_load_lds_dwordx4 v[{WA+2*ii}:{WA+2*ii+1}], off')
        vm.issue(('w', slab))
    def w_adv(ii):
        e(f'v_add_co_u32 v{WA+2*ii}, vcc, v{WA+2*ii}, v{WI+ii}')
        e(f'v_addc_co_u32 v{WA+2*ii+1}, vcc, 0, v{WA+2*ii+1}, vcc')

    for i in range(8): x_dma(0, i)
    e(f'v_mov_b32 v{T+8}, s{S_P0}'); e(f'v_mov_b32 v{T+9}, s{S_P0+1}')
    e(f'v_mov_b32 v{T+10}, s{S_P1}'); e(f'v_mov_b32 v{T+11}, s{S_P1+1}')
    e(f'v_mov_b32 v{T+12}, s{S_Q0}'); e(f'v_mov_b32 v{T+13}, s{S_Q0+1}')
    e(f'v_mov_b32 v{T+14}, s{S_Q1}'); e(f'v_mov_b32 v{T+15}, s{S_Q1+1}')
    e(f'v_mov_b32 v{T+16}, s{S_PM}'); e(f'v_mov_b32 v{T+17}, s{S_PQ}')
    e(f's_lshl_b32 s{S_T1}, s{S_W}, 4')
    e(f's_movk_i32 s{S_T2}, 3277')
    for ii in range(5):
        a = WA + 2*ii
        e(f'v_add_u32 v{T}, {64*ii}, v0')
        e(f'v_mul_u32_u24 v{T+1}, s{S_T2}, v{T}')
        e(f'v_lshrrev_b32 v{T+1}, 16, v{T+1}')
        e(f'v_mul_u32_u24 v{T+2}, 20, v{T+1}')
        e(f'v_sub_u32 v{T+2}, v{T}, v{T+2}')
        e(f'v_cmp_le_u32 s[{S_EX}:{S_EX+1}], 10, v{T+2}')
        e(f'v_subrev_u32 v{T+3}, 10, v{T+2}')
        e(f'v_add_u32 v{T+1}, s{S_T1}, v{T+1}')
        e(f'v_cndmask_b32 v{T+2}, v{T+2}, v{T+3}, s[{S_EX}:{S_EX+1}]')
        e(f'v_cndmask_b32 v{T+3}, v{T+8}, v{T+10}, s[{S_EX}:{S_EX+1}]')
        e(f'v_cmp_le_u32 vcc, 8, v{T+2}')
        e(f'v_cndmask_b32 v{T+4}, v{T+9}, v{T+11}, s[{S_EX}:{S_EX+1}]')
        e(f'v_cndmask_b32 v{T+5}, v{T+12}, v{T+14}, s[{S_EX}:{S_EX+1}]')
        e(f'v_cndmask_b32 v{T+6}, v{T+13}, v{T+15}, s[{S_EX}:{S_EX+1}]')
        e(f'v_subrev_u32 v{T+7}, 8, v{T+2}')
        e(f'v_cndmask_b32 v{T+3}, v{T+3}, v{T+5}, vcc')
        e(f'v_cndmask_b32 v{T+4}, v{T+4}, v{T+6}, vcc')
        e(f'v_cndmask_b32 v{T+5}, v{T+16}, v{T+17}, vcc')
        e(f'v_cndmask_b32 v{T+6}, v{T+2}, v{T+7}, vcc')
        e(f'v_lshlrev_b32 v{T+6}, 4, v{T+6}')
        e(f'v_mad_u32_u24 v{T+6}, v{T+1}, v{T+5}, v{T+6}')
        e(f'v_add_co_u32 v{a}, vcc, v{T+3}, v{T+6}')
        e(f'v_lshlrev_b32 v{WI+ii}, 6, v{T+5}')
        e(f'v_addc_co_u32 v{a+1}, vcc, 0, v{T+4}, vcc')
        w_dma(0, ii)
    for ii in range(5): w_adv(ii)
    vm.tags[('slab', 0)] = vm.n
    for ii in range(5): w_dma(1, ii)
    vm.tags[('slab', 1)] = vm.n
    for ii in range(5): w_adv(ii)
    if 'lprio' in EXP: e('s_setprio 3')
    if fused:
        emit_g2_decode(e)
        e(f'v_lshlrev_b32 v{VL}, 10, v0')
        e(f's_lshl_b32 s{S_T0}, s{S_C2}, 7')
        e(f'v_add_u32 v{VL}, s{S_T0}, v{VL}')
    def w2_prefetch(n_expr_imm, only_w0=False):
        lab = f'L_pf{n_expr_imm}'
        if only_w0:
            e(f's_cmp_lg_u32 s{S_W}, 0'); e(f's_cbranch_scc1 {lab}_end')
        e(f's_and_b32 s{S_T0}, s{S_R2}, 3')
        e(f's_mul_i32 s{S_T0}, s{S_T0}, 9')
        e(f's_add_u32 s{S_T0}, s{S_T0}, s{S_W}')
        e(f's_add_u32 s{S_T0}, s{S_T0}, {n_expr_imm}')
        e(f's_cmp_ge_u32 s{S_T0}, 28')
        e(f's_cbranch_scc1 {lab}_wo')
        e(f's_lshl_b32 s{S_T0}, s{S_T0}, 16')
        e(f'buffer_load_dword v{VL+1}, v{VL}, s[{S_SRDW2}:{S_SRDW2+3}], s{S_T0} offen')
        e(f's_branch {lab}_join')
        e.label(f'{lab}_wo')
        e(f's_sub_u32 s{S_T0}, s{S_T0}, 28')
        e(f's_lshl_b32 s{S_T0}, s{S_T0}, 16')
        e(f'buffer_load_dword v{VL+1}, v{VL}, s[{S_SRDWO}:{S_SRDWO+3}], s{S_T0} offen')
        e.label(f'{lab}_join')
        e.label(f'{lab}_end')

    for s in range(8):
        if 'lit' in EXP and s == 4: stamp(e, 2)
        if 'lit' in EXP and s == 5: stamp(e, 5)
        vm.wait(('slab', s))
        if s == 0 and 'lit' not in EXP: stamp(e, 2)
        if 'lit' in EXP and s == 4: stamp(e, 3)
        if 'lit' in EXP and s == 5: stamp(e, 6)
        e('s_barrier')
        if 'lit' in EXP and s == 4: stamp(e, 4)
        if s == 0:
            e('s_cmp_lg_u32 s2, 0'); e('s_cbranch_scc1 L_nogate')
            e(f's_cmp_lg_u32 s{S_W}, 0'); e('s_cbranch_scc1 L_nogate')
            e(f'v_mov_b32 v{T}, 0'); e(f'v_mov_b32 v{T+1}, 1')
            e(f's_mov_b64 s[{S_EX}:{S_EX+1}], exec'); e('s_mov_b64 exec, 1')
            e(f'global_store_dword v{T}, v{T+1}, {pair(S_DBG)} sc1')
            e(f's_mov_b64 exec, s[{S_EX}:{S_EX+1}]')
            e.label('L_nogate')
        if s == 1:
            e(f's_cmp_lg_u32 s{S_W}, 0'); e('s_cbranch_scc1 L_nors')
            e(f's_cmp_eq_u32 s{S_PROD}, 0'); e('s_cbranch_scc1 L_nors')
            e(f's_lshl_b32 s{S_T0}, s{S_R}, 2')
            e(f's_add_u32 s{S_T0}, s{S_T0}, 8')
            e(f'v_mov_b32 v{T}, s{S_T0}'); e(f'v_mov_b32 v{T+1}, 1')
            e(f's_mov_b64 s[{S_EX}:{S_EX+1}], exec'); e('s_mov_b64 exec, 1')
            e(f'global_atomic_add v{T}, v{T+1}, {pair(S_DBG)}')
            e(f's_mov_b64 exec, s[{S_EX}:{S_EX+1}]')
            e.label('L_nors')
        if s == 6:
            e(f's_cmp_eq_u32 s{S_W}, 1'); e('s_cbranch_scc1 L_rs_fetch')
            e(f's_cmp_lg_u32 s{S_W}, 0'); e('s_cbranch_scc1 L_rs_done')
            poll(e, 'gate', S_DBG, None, 0, 1, T)
            e('s_branch L_rs_done')
            e.label('L_rs_fetch')
            e(f's_lshl_b32 s{S_T1}, s{S_R}, 2')
            e(f's_add_u32 s{S_T1}, s{S_T1}, 8')
            poll(e, 'rs', S_DBG, S_T1, 0, 8, T)
            e(f's_lshl_b32 s{S_T0}, s{S_R}, 11')
            e(f's_add_u32 s{S_T0}, s{S_T0}, {WS_RS}')
            e(f's_add_u32 s{S_KVB}, s{S_WS}, s{S_T0}'); e(f's_addc_u32 s{S_KVB+1}, s{S_WS+1}, 0')
            e(f'v_lshlrev_b32 v{T}, 4, v0')
            e(f'global_load_dwordx4 v[{T+4}:{T+7}], v{T}, {pair(S_KVB)} sc1')
            e(f'global_load_dwordx4 v[{T+8}:{T+11}], v{T}, {pair(S_KVB)} offset:1024 sc1')
            e(f'v_add_u32 v{T}, {ROWSTAT}, v{T}')
            e('s_waitcnt vmcnt(0)')
            e(f'ds_write_b128 v{T}, v[{T+4}:{T+7}]')
            e(f'ds_write_b128 v{T}, v[{T+8}:{T+11}] offset:1024')
            e.label('L_rs_done')
        if fused and s >= 6: emit_loader_w2(e, vm, s - 6)
        nxt = s + 2 if s <= 5 else None
        if nxt is not None and not ('nodma' in EXP and s >= 1):
            for i in range(8): x_dma(nxt, i)
            for ii in range(5):
                w_dma(nxt, ii); w_adv(ii)
        if nxt is not None: vm.tags[('slab', nxt)] = vm.n
        if fused and 'nol2pf' not in EXP:
            PF0 = 1 if 'pfearly' in EXP else 2
            if s == PF0: w2_prefetch(0); vm.issue()
            if s == PF0 + 1: w2_prefetch(4); vm.issue()
            if s == PF0 + 2: w2_prefetch(8, True)
    e('s_waitcnt lgkmcnt(0)')
    e('s_barrier')
    if 'lit' not in EXP: stamp(e, 3)
    if fused: emit_loader_w2(e, vm, 2)

def poll(e, name, sbase, soff, imm, target, T):
    if soff is None: e(f'v_mov_b32 v{T}, 0')
    else: e(f'v_mov_b32 v{T}, s{soff}')
    e(f's_mov_b32 s{S_T2}, 0')
    e.label(f'L_poll_{name}')
    e(f'global_load_dword v{T+1}, v{T}, {pair(sbase)} offset:{imm} sc1')
    e('s_waitcnt vmcnt(0)')
    e(f'v_readfirstlane_b32 s{S_T3}, v{T+1}')
    e(f's_cmp_ge_u32 s{S_T3}, {target}')
    e(f's_cbranch_scc1 L_pollok_{name}')
    e(f's_add_u32 s{S_T2}, s{S_T2}, 1')
    e(f's_cmp_lt_u32 s{S_T2}, 400000')
    e('s_sleep 1')
    e(f's_cbranch_scc1 L_poll_{name}')
    e.label(f'L_pollok_{name}')

ACC = 96
FR = [40, 68]
XA = 32
WAD = 36
def acc(u, rt): return ACC + (u*2 + rt)*16

def emit_g1_compute(e):
    e.label('L_compute')
    e(f's_mov_b32 s{S_W}, s{S_WAVE}')
    T = 2
    e(f's_cmp_eq_u32 s{S_PROD}, 0')
    e('s_cbranch_scc1 L_c_nors1')
    e(f's_lshl_b32 s{S_T0}, s{S_R}, 3')
    e(f's_add_u32 s{S_T0}, s{S_T0}, s{S_PROD}')
    e(f's_sub_u32 s{S_T0}, s{S_T0}, 1')
    e(f's_lshl_b32 s{S_T0}, s{S_T0}, 2')
    e(f's_add_u32 s{S_HEAD}, s{S_T0}, s{S_W}')
    e(f's_lshl_b32 s{S_T1}, s{S_HEAD}, 13')
    e(f's_add_u32 s{S_KVB}, s{S_X}, s{S_T1}'); e(f's_addc_u32 s{S_KVB+1}, s{S_X+1}, 0')
    e(f'v_lshrrev_b32 v{T}, 3, v0')
    e(f'v_lshlrev_b32 v{T}, 10, v{T}')
    e(f'v_and_b32 v{T+1}, 7, v0')
    e(f'v_lshl_add_u32 v{T}, v{T+1}, 4, v{T}')
    for i in range(8):
        e(f'global_load_dwordx4 v[{40+4*i}:{43+4*i}], v{T}, {pair(S_KVB)} offset:{128*i}')
    e.label('L_c_nors1')
    e(f'v_and_b32 v{T}, 31, v0')
    e(f'v_lshrrev_b32 v{T+1}, 5, v0')
    e(f'v_lshrrev_b32 v{T+2}, 1, v{T}')
    e(f'v_and_b32 v{T+2}, 7, v{T+2}')
    e(f'v_xor_b32 v{T+2}, v{T+2}, v{T+1}')
    e(f'v_lshlrev_b32 v{T+2}, 4, v{T+2}')
    e(f'v_lshl_add_u32 v{T+2}, v{T}, 7, v{T+2}')
    e(f's_lshl_b32 s{S_T0}, s{S_W}, 13')
    e(f'v_add_u32 v{XA}, s{S_T0}, v{T+2}')
    for t in range(1, 4):
        e(f'v_xor_b32 v{XA+t}, {t<<5}, v{XA}')
    e(f'v_bfe_u32 v{T}, v0, 4, 1')
    e(f'v_mul_u32_u24 v{T}, 160, v{T}')
    e(f'v_lshrrev_b32 v{T+1}, 5, v0')
    e(f'v_lshlrev_b32 v{T+1}, 3, v{T+1}')
    e(f'v_bfe_u32 v{T+2}, v0, 2, 2')
    e(f'v_add_u32 v{T+1}, v{T+1}, v{T+2}')
    e(f'v_mul_u32_u24 v{T+1}, 320, v{T+1}')
    e(f'v_add_u32 v{T}, v{T}, v{T+1}')
    e(f'v_and_b32 v{T+1}, 1, v0')
    e(f'v_lshlrev_b32 v{T+1}, 4, v{T+1}')
    e(f'v_bfe_u32 v{T+2}, v0, 1, 1')
    e(f'v_lshl_add_u32 v{T+1}, v{T+2}, 3, v{T+1}')
    e(f'v_add3_u32 v{WAD}, v{T}, v{T+1}, v0') if False else None
    e(f'v_add_u32 v{T}, v{T}, v{T+1}')
    e(f'v_add_u32 v{WAD}, {WOFF}, v{T}')
    for k in range(160): e(f'v_mov_b32 v{ACC+k}, 0')
    e(f's_cmp_eq_u32 s{S_PROD}, 0')
    e('s_cbranch_scc1 L_c_nors2')
    e('v_mov_b32 v8, 0'); e('v_mov_b32 v9, 0'); e('v_mov_b32 v10, 0'); e('v_mov_b32 v11, 0')
    e('v_mov_b32 v12, 0x3f803f80')
    e('s_waitcnt vmcnt(0)')
    for k in range(32):
        e(f'v_dot2_f32_bf16 v{8+(k&1)}, v{40+k}, v12, v{8+(k&1)}')
        e(f'v_dot2_f32_bf16 v{10+(k&1)}, v{40+k}, v{40+k}, v{10+(k&1)}')
    e('v_add_f32 v8, v8, v9'); e('v_add_f32 v10, v10, v11')
    for m in ('quad_perm:[1,0,3,2]', 'quad_perm:[2,3,0,1]', 'row_half_mirror'):
        e(f'v_add_f32_dpp v8, v8, v8 {m} row_mask:0xf bank_mask:0xf')
        e(f'v_add_f32_dpp v10, v10, v10 {m} row_mask:0xf bank_mask:0xf')
    e(f's_mov_b32 s{S_T2}, {fhex(1.0/512)}')
    e(f's_mov_b32 s{S_T3}, {fhex(1e-5)}')
    e(f'v_mul_f32 v8, s{S_T2}, v8')
    e(f'v_mul_f32 v10, s{S_T2}, v10')
    e('v_fma_f32 v10, -v8, v8, v10')
    e('v_max_f32 v10, 0, v10')
    e(f'v_add_f32 v10, s{S_T3}, v10')
    e('v_rsq_f32 v9, v10')
    e(f's_lshl_b32 s{S_T1}, s{S_HEAD}, 6')
    e(f's_add_u32 s{S_T1}, s{S_T1}, {WS_RS}')
    e(f's_add_u32 s{S_KVB}, s{S_WS}, s{S_T1}'); e(f's_addc_u32 s{S_KVB+1}, s{S_WS+1}, 0')
    e('v_and_b32 v10, 7, v0')
    e('v_cmp_eq_u32 vcc, 0, v10')
    e('v_lshrrev_b32 v10, 3, v0')
    e('v_lshlrev_b32 v10, 3, v10')
    e(f's_and_saveexec_b64 s[{S_EX}:{S_EX+1}], vcc')
    e(f'global_store_dwordx2 v10, v[8:9], {pair(S_KVB)} sc1')
    e(f's_mov_b64 exec, s[{S_EX}:{S_EX+1}]')
    e.label('L_c_nors2')

    e(f's_mov_b32 s{S_SRDX}, s{S_X}'); e(f's_mov_b32 s{S_SRDX+1}, s{S_X+1}')
    e(f's_mov_b32 s{S_SRDX+2}, 0x200000'); e(f's_mov_b32 s{S_SRDX+3}, 0x00020000')
    e('v_lshrrev_b32 v14, 3, v0')
    e('v_lshlrev_b32 v14, 10, v14')
    e('v_lshrrev_b32 v15, 4, v0')
    e('v_and_b32 v16, 7, v0')
    e('v_xor_b32 v16, v16, v15')
    e('v_lshl_add_u32 v17, v16, 4, v14')
    e('v_xor_b32 v16, 4, v16')
    e('v_lshl_add_u32 v18, v16, 4, v14')
    e(f's_lshl_b32 s{S_XROW}, s{S_R}, 18')
    e(f's_lshl_b32 s{S_T0}, s{S_W}, 16')
    e(f's_add_u32 s{S_XROW}, s{S_XROW}, s{S_T0}')
    e(f's_lshl_b32 s{S_LDSX}, s{S_W}, 13')
    for i in range(8):
        e(f's_add_u32 m0, s{S_LDSX}, {STAGE + 1024*i}')
        e(f's_add_u32 s{S_T0}, s{S_XROW}, {8192*i + 128}')
        e(f'buffer_load_dwordx4 v{17 + (i&1)}, s[{S_SRDX}:{S_SRDX+3}], s{S_T0} offen lds')

    def reads(t, set_):
        f = FR[set_]
        r = []
        for rt in range(2):
            r.append(f'ds_read_b128 v[{f+4*rt}:{f+4*rt+3}], v{XA+t} offset:{4096*rt}')
        for u in range(5):
            for j in range(2):
                off = (16*t + 4*j)*320 + 32*u
                r.append(f'ds_read_b64_tr_b16 v[{f+8+4*u+2*j}:{f+8+4*u+2*j+1}], v{WAD} offset:{off}')
        order = [2, 3, 0, 1] + list(range(4, 12))
        return [r[i] for i in order]
    def mfmas(set_):
        f = FR[set_]
        m = []
        for u in range(5):
            for rt in range(2):
                a = acc(u, rt)
                m.append(f'v_mfma_f32_32x32x16_bf16 v[{a}:{a+15}], v[{f+8+4*u}:{f+8+4*u+3}], v[{f+4*rt}:{f+4*rt+3}], v[{a}:{a+15}]')
        return m
    RPG = 3 if 'rpg3' in EXP else 2
    CSL, CSH, CS4L, CS4H, CT = 20, 21, 22, 23, 24
    def cs_ops(set_, t, w):
        f = FR[set_]
        ops = []
        units = [(w, CSL, CSH)] + ([(4, CS4L, CS4H)] if t == w else [])
        n = 0
        for (u, aL, aH) in units:
            for d in range(4):
                r = f + 8 + 4*u + d
                t0 = CT + 2*(n % 3); n += 1
                ops += [f'v_lshlrev_b32 v{t0}, 16, v{r}', f'v_and_b32 v{t0+1}, s{S_MASKH}, v{r}',
                        f'v_add_f32 v{aL}, v{aL}, v{t0}', f'v_add_f32 v{aH}, v{aH}, v{t0+1}']
        return ops
    def step(rd, mm, valu=(), extra=None, skip_first=0):
        ri = 0; vi = 0
        valu = list(valu)
        ng = len(mm)
        nread_gaps = (len(rd) + RPG - 1) // RPG
        quota = [0]*ng
        rem = len(valu)
        g = ng - 1
        while rem > 0:
            progressed = False
            for cap in range(1, 9):
                for gi in reversed(range(ng - 1)):
                    lim = cap - (1 if gi < nread_gaps else 0)
                    if rem > 0 and quota[gi] < lim:
                        quota[gi] += 1; rem -= 1; progressed = True
                if rem == 0: break
            assert progressed
        for k, m in enumerate(mm):
            if k >= skip_first: e(m)
            for _ in range(RPG):
                if ri < len(rd): e(rd[ri]); ri += 1
            for _ in range(quota[k]):
                e(valu[vi]); vi += 1
            if extra and k in extra:
                for x_ in extra[k]: e(x_)
        assert ri == len(rd) and vi == len(valu)

    for k in range(4): e(f'v_mov_b32 v{CSL+k}, 0')
    e(f's_mov_b32 s{S_MASKH}, 0xffff0000')
    if 'prio' in EXP: e('s_setprio 3')
    e('s_barrier')
    stamp(e, 2)
    for r_ in reads(0, 0): e(r_)
    e(f's_mov_b32 s{S_SLAB}, 0')
    e(f's_mov_b32 s{S_T3}, 0')
    for w in range(1, 4):
        e(f's_cmp_eq_u32 s{S_W}, {w}')
        e(f's_cbranch_scc1 L_cloop{w}')
    for w in range(4):
        cs = (lambda set_, t: cs_ops(set_, t, w)) if 'nocolsum' not in EXP else (lambda set_, t: [])
        e.label(f'L_cloop{w}')
        for t in range(2):
            e('s_waitcnt lgkmcnt(0)')
            step(reads(t+1, (t+1) & 1), mfmas(t & 1), cs(t & 1, t))
        e('s_waitcnt lgkmcnt(0)')
        adv = {6: [f's_add_u32 s{S_T3}, s{S_T3}, 1', f's_mov_b32 s{S_DELTA}, {STAGE}', f's_cmp_eq_u32 s{S_T3}, 3',
                   f's_cselect_b32 s{S_DELTA}, {(-2*STAGE) & 0xffffffff}, s{S_DELTA}', f's_cselect_b32 s{S_T3}, 0, s{S_T3}'],
               7: [f'v_add_u32 v{XA+t}, s{S_DELTA}, v{XA+t}' for t in range(3)],
               8: [f'v_add_u32 v{XA+3}, s{S_DELTA}, v{XA+3}', f'v_add_u32 v{WAD}, s{S_DELTA}, v{WAD}',
                   f's_add_u32 s{S_SLAB}, s{S_SLAB}, 1', f's_cmp_eq_u32 s{S_SLAB}, 8']}
        step(reads(3, 1), mfmas(0), cs(0, 2), extra=adv)
        e('s_waitcnt vmcnt(0) lgkmcnt(0)')
        m3 = mfmas(1)
        e(m3[0])
        e(f's_cbranch_scc1 L_clast{w}')
        e('s_barrier')
        step(reads(0, 0), m3, cs(1, 3), skip_first=1)
        e(f's_branch L_cloop{w}')
        e.label(f'L_clast{w}')
        step([], m3, cs(1, 3), skip_first=1)
        if w < 3: e('s_branch L_cdone')
    e.label('L_cdone')
    e(f'v_add_f32 v{CSL}, v{CSL}, v{CSH}')
    e(f'v_add_f32 v{CS4L}, v{CS4L}, v{CS4H}')
    e(f'v_mov_b32 v{CT}, v{CSL}')
    e(f'v_mov_b32 v{CT+1}, v{CS4L}')
    e(f'v_bfe_u32 v{CT+2}, v0, 2, 1')
    e(f'v_lshlrev_b32 v{CT+2}, 3, v{CT+2}')
    e(f'v_permlane32_swap_b32 v{CSL}, v{CT}')
    e(f'v_permlane32_swap_b32 v{CS4L}, v{CT+1}')
    e(f'v_bfe_u32 v{CT+3}, v0, 3, 1')
    e(f'v_lshl_add_u32 v{CT+2}, v{CT+3}, 2, v{CT+2}')
    e(f'v_and_b32 v{CT+3}, 3, v0')
    e(f'v_add_u32 v{CT+2}, v{CT+2}, v{CT+3}')
    e(f'v_bfe_u32 v{CT+3}, v0, 4, 1')
    e(f'v_lshl_add_u32 v{CT+4}, v{CT+3}, 4, v{CT+2}')
    e(f'v_mul_u32_u24 v{CT+3}, 80, v{CT+3}')
    e(f'v_add_u32 v{CT+2}, v{CT+2}, v{CT+3}')
    e(f'v_add_f32 v{CSL}, v{CSL}, v{CT}')
    e(f'v_add_f32 v{CS4L}, v{CS4L}, v{CT+1}')
    e(f's_lshl_b32 s{S_T0}, s{S_W}, 6')
    e(f's_add_u32 s{S_T0}, s{S_T0}, {COLSUM}')
    e(f'v_lshl_add_u32 v{CT+3}, v{CT+2}, 2, s{S_T0}')
    e(f's_lshl_b32 s{S_T0}, s{S_W}, 7')
    e(f's_add_u32 s{S_T0}, s{S_T0}, {COLSUM + 640}')
    e(f'v_lshl_add_u32 v{CT+4}, v{CT+4}, 2, s{S_T0}')
    e(f's_mov_b64 s[{S_EX}:{S_EX+1}], exec')
    e('s_mov_b64 exec, 0xffffffff')
    e(f'ds_write_b32 v{CT+3}, v{CSL}')
    e(f'ds_write_b32 v{CT+4}, v{CS4L}')
    e(f's_mov_b64 exec, s[{S_EX}:{S_EX+1}]')
    e('s_waitcnt lgkmcnt(0)')
    e('s_barrier')
    stamp(e, 3)
    e('s_setprio 0')

def emit_g1_epilogue(e):
    vm = VM(e)
    MU = 2
    RS = 4
    ST = 6
    C1 = 10
    C2 = 12
    KK = 14
    CSA = 16
    VL16 = 17
    CS = 20
    TT = 36
    OUTP = 68
    e(f'v_and_b32 v{ST}, 31, v0')
    e(f'v_lshlrev_b32 v{ST}, 3, v{ST}')
    e(f's_lshl_b32 s{S_T0}, s{S_W}, 9')
    e(f's_add_u32 s{S_T0}, s{S_T0}, {ROWSTAT}')
    e(f'v_add_u32 v{ST}, s{S_T0}, v{ST}')
    e(f'ds_read_b64 v[{TT}:{TT+1}], v{ST}')
    e(f'ds_read_b64 v[{TT+2}:{TT+3}], v{ST} offset:256')
    e(f'v_lshrrev_b32 v{CSA}, 5, v0')
    e(f'v_lshlrev_b32 v{CSA}, 5, v{CSA}')
    e(f'v_add_u32 v{CSA}, {COLSUM}, v{CSA}')
    e(f'v_lshlrev_b32 v{VL16}, 4, v0')
    e('s_waitcnt lgkmcnt(0)')
    for rt in range(2):
        e(f'v_mov_b32 v{MU+rt}, v{TT+2*rt}')
        e(f'v_mov_b32 v{RS+rt}, v{TT+2*rt+1}')
    e(f's_mov_b32 s{S_C1}, {fhex(-LOG2E)}')
    e(f's_mov_b32 s{S_C1+1}, {fhex(LOG2E)}')
    e(f's_mov_b32 s{S_C1+2}, {fhex(LN2)}')
    e(f's_mov_b32 s{S_C1+3}, {fhex(1e-6)}')
    for rt in range(2):
        e(f'v_mul_f32 v{C1+rt}, s{S_C1}, v{RS+rt}')
        e(f'v_mul_f32 v{C2+rt}, s{S_C1+1}, v{RS+rt}')
        e(f'v_mul_f32 v{KK+rt}, v{RS+rt}, v{RS+rt}')
    for rt in range(2):
        e(f'v_rcp_f32 v{KK+rt}, v{KK+rt}')
    e(f'v_mov_b32 v76, s{S_C1+2}')
    e(f'v_mov_b32 v77, s{S_C1+3}')
    e(f's_lshl_b32 s{S_T0}, s{S_R}, 3')
    e(f's_lshl_b32 s{S_T1}, s{S_W}, 1')
    e(f's_add_u32 s{S_T0}, s{S_T0}, s{S_T1}')

    def load_cs(u):
        if u < 4:
            for j in range(4):
                off = ((j >> 1)*5 + u)*64 + (j & 1)*16
                e(f'ds_read_b128 v[{CS+4*j}:{CS+4*j+3}], v{CSA} offset:{off}')
        else:
            def rd(dst, w):
                for j in range(4):
                    off = 640 + 128*w + (j >> 1)*64 + (j & 1)*16
                    e(f'ds_read_b128 v[{dst+4*j}:{dst+4*j+3}], v{CSA} offset:{off}')
            def ad(src):
                for p in range(8):
                    e(f'v_pk_add_f32 v[{CS+2*p}:{CS+2*p+1}], v[{CS+2*p}:{CS+2*p+1}], v[{src+2*p}:{src+2*p+1}]')
            rd(CS, 0); rd(TT, 1); rd(TT+16, 2)
            e('s_waitcnt lgkmcnt(4)')
            ad(TT)
            rd(TT, 3)
            e('s_waitcnt lgkmcnt(4)')
            ad(TT+16)
            e('s_waitcnt lgkmcnt(0)')
            ad(TT)
    def lnfix(a, rt):
        for p in range(8):
            e(f'v_pk_fma_f32 v[{a+2*p}:{a+2*p+1}], v[{CS+2*p}:{CS+2*p+1}], v[{MU+rt}:{MU+rt+1}], v[{a+2*p}:{a+2*p+1}] op_sel_hi:[1,0,1] neg_lo:[0,1,0] neg_hi:[0,1,0]'
              if rt == 0 else
              f'v_pk_fma_f32 v[{a+2*p}:{a+2*p+1}], v[{CS+2*p}:{CS+2*p+1}], v[{MU}:{MU+1}], v[{a+2*p}:{a+2*p+1}] op_sel:[0,1,0] op_sel_hi:[1,1,1] neg_lo:[0,1,0] neg_hi:[0,1,0]')
    def bc(reg, rt):
        return f'v[{reg}:{reg+1}]', rt, rt
    def pk(op, d, s0, s1, s2=None, b1=None, b2=None, neg1=False):
        n = 3 if s2 is not None else 2
        sel = [0]*n; selh = [1]*n
        if b1 is not None: sel[1] = b1; selh[1] = b1
        if b2 is not None: sel[2] = b2; selh[2] = b2
        ops = f'v[{d}:{d+1}], v[{s0}:{s0+1}], v[{s1}:{s1+1}]' + (f', v[{s2}:{s2+1}]' if s2 is not None else '')
        mods = ''
        if any(sel): mods += ' op_sel:[' + ','.join(map(str, sel)) + ']'
        if not all(selh): mods += ' op_sel_hi:[' + ','.join(map(str, selh)) + ']'
        if neg1:
            z = ['0']*n; z[1] = '1'
            mods += ' neg_lo:[' + ','.join(z) + '] neg_hi:[' + ','.join(z) + ']'
        e(f'{op} {ops}{mods}')

    def f_unit(u, sbase0, sbase1, imm):
        load_cs(u)
        e('s_waitcnt lgkmcnt(0)')
        for rt in range(2):
            a = acc(u, rt)
            lnfix(a, rt)
            for p in range(4):
                pk('v_pk_mul_f32', TT+2*p, a+2*p, C1, b1=rt)
            for p in range(4):
                pk('v_pk_mul_f32', a+8+2*p, a+2*p, a+8+2*p)
            for k in range(8): e(f'v_exp_f32 v{TT+k}, v{TT+k}')
            for p in range(4):
                pk('v_pk_fma_f32', TT+2*p, TT+2*p, KK, KK, b1=rt, b2=rt)
            for k in range(8): e(f'v_rcp_f32 v{TT+k}, v{TT+k}')
            for p in range(4):
                pk('v_pk_mul_f32', TT+2*p, TT+2*p, a+8+2*p)
            o = OUTP + 4*rt
            for p in range(4):
                e(f'v_cvt_pk_bf16_f32 v{o+p}, v{TT+2*p}, v{TT+2*p+1}')
            sb = sbase0 if rt == 0 else sbase1
            e(f'global_store_dwordx4 v{VL16}, v[{o}:{o+3}], {pair(sb)} offset:{imm} sc1')
            vm.issue()
    def phi8(a, rt, o):
        for p in range(4):
            pk('v_pk_mul_f32', a+2*p, a+2*p, C2, b1=rt)
        for k in range(8): e(f'v_min_f32 v{TT+k}, 0, v{a+k}')
        for p in range(4):
            pk('v_pk_add_f32', a+2*p, a+2*p, TT+2*p, neg1=True)
        for k in range(8): e(f'v_exp_f32 v{TT+k}, v{TT+k}')
        for p in range(4):
            pk('v_pk_fma_f32', a+2*p, a+2*p, 76, 76, b1=0, b2=1)
        for p in range(4):
            pk('v_pk_add_f32', a+2*p, a+2*p, TT+2*p)
        for p in range(4):
            e(f'v_cvt_pk_bf16_f32 v{o+p}, v{a+2*p}, v{a+2*p+1}')
    def q_unit(u, sbase0, sbase1):
        load_cs(u)
        e('s_waitcnt lgkmcnt(0)')
        for rt in range(2):
            a = acc(u, rt)
            lnfix(a, rt)
            sb = sbase0 if rt == 0 else sbase1
            for hh in range(2):
                o = OUTP + 4*hh
                phi8(a + 8*hh, rt, o)
                e(f'global_store_dwordx4 v{VL16}, v[{o}:{o+3}], {pair(sb)} offset:{1024*hh} sc1')
                vm.issue()

    def hbase(dst, kappa_s, rt):
        e(f's_add_u32 s{S_T1}, s{S_T0}, {rt}')
        e(f's_mul_i32 s{S_T1}, s{S_T1}, 112')
        e(f's_add_u32 s{S_T1}, s{S_T1}, s{kappa_s}')
        e(f's_lshl_b32 s{S_T1}, s{S_T1}, 10')
        e(f's_add_u32 s{dst}, s{S_WS}, s{S_T1}'); e(f's_addc_u32 s{dst+1}, s{S_WS+1}, 0')

    e(f's_cmp_eq_u32 s{S_TYPE}, 1')
    e('s_cbranch_scc1 L_ep_b1')
    e(f's_lshl_b32 s{S_KAPM}, s{S_I}, 2')
    e(f's_mul_i32 s{S_T1}, s{S_I}, 5')
    e(f's_add_u32 s{S_T1}, s{S_T1}, 64')
    e(f's_cmp_eq_u32 s{S_TYPE}, 2')
    e(f's_cselect_b32 s{S_KAPM}, s{S_T1}, s{S_KAPM}')
    hbase(S_HB0, S_KAPM, 0); hbase(S_HB1, S_KAPM, 1)
    for u in range(4): f_unit(u, S_HB0, S_HB1, 1024*u)
    e(f's_cmp_eq_u32 s{S_TYPE}, 2')
    e('s_cbranch_scc1 L_ep_f4b2')
    for rt in range(2):
        d = S_H40 if rt == 0 else S_H41
        e(f's_add_u32 s{S_T1}, s{S_T0}, {rt}')
        e(f's_lshl_b32 s{S_T1}, s{S_T1}, 5')
        e(f's_lshl_b32 s{S_T2}, s{S_I}, 1')
        e(f's_add_u32 s{S_T1}, s{S_T1}, s{S_T2}')
        e(f's_lshl_b32 s{S_T1}, s{S_T1}, 10')
        e(f's_add_u32 s{S_T1}, s{S_T1}, {WS_PQ}')
        e(f's_add_u32 s{d}, s{S_WS}, s{S_T1}'); e(f's_addc_u32 s{d+1}, s{S_WS+1}, 0')
    q_unit(4, S_H40, S_H41)
    e('s_branch L_ep_done')
    e.label('L_ep_f4b2')
    e(f's_add_u32 s{S_KAP4}, s{S_KAPM}, 4')
    e('s_branch L_ep_f4')
    e.label('L_ep_b1')
    emit_kv_units(e, load_cs, lnfix, phi8, pk, dict(MU=MU, RS=RS, TT=TT, OUTP=OUTP, CS=CS))
    e(f's_add_u32 s{S_KAP4}, s{S_I}, 104')
    e.label('L_ep_f4')
    hbase(S_H40, S_KAP4, 0); hbase(S_H41, S_KAP4, 1)
    f_unit(4, S_H40, S_H41, 0)
    e.label('L_ep_done')

TBUF = STAGE
T_T = TBUF
T_D2 = TBUF + 16384

def emit_kv_units(e, load_cs, lnfix, phi8, pk, R):
    MU, RS, TT, OUTP, CS = R['MU'], R['RS'], R['TT'], R['OUTP'], R['CS']
    TW = 78
    TR0, TR1 = 79, 80
    XF = 84
    ONE = 81
    e(f'v_and_b32 v{TW}, 31, v0')
    e(f'v_bfe_u32 v{TT}, v0, 1, 2')
    e(f'v_lshrrev_b32 v{TT+1}, 5, v0')
    e(f'v_xor_b32 v{TT}, v{TT}, v{TT+1}')
    e(f'v_lshlrev_b32 v{TT}, 4, v{TT}')
    e(f'v_lshl_add_u32 v{TW}, v{TW}, 6, v{TT}')
    e(f's_lshl_b32 s{S_T1}, s{S_W}, 12')
    e(f's_add_u32 s{S_T1}, s{S_T1}, {T_T}')
    e(f'v_add_u32 v{TW}, s{S_T1}, v{TW}')
    e(f'v_bfe_u32 v{TT}, v0, 4, 1')
    e(f'v_lshlrev_b32 v{TT}, 1, v{TT}')
    e(f'v_and_b32 v{TT+1}, 1, v0')
    e(f'v_add_u32 v{TT}, v{TT}, v{TT+1}')
    e(f'v_bfe_u32 v{TT+1}, v0, 3, 1')
    e(f'v_xor_b32 v{TT}, v{TT}, v{TT+1}')
    e(f'v_lshlrev_b32 v{TT}, 4, v{TT}')
    e(f'v_bfe_u32 v{TT+1}, v0, 1, 1')
    e(f'v_lshl_add_u32 v{TT}, v{TT+1}, 3, v{TT}')
    e(f'v_lshrrev_b32 v{TT+1}, 5, v0')
    e(f'v_lshlrev_b32 v{TT+1}, 3, v{TT+1}')
    e(f'v_bfe_u32 v{TT+2}, v0, 2, 2')
    e(f'v_add_u32 v{TT+1}, v{TT+1}, v{TT+2}')
    e(f'v_lshl_add_u32 v{TT}, v{TT+1}, 6, v{TT}')
    e(f'v_add_u32 v{TR0}, s{S_T1}, v{TT}')
    e(f'v_xor_b32 v{TR1}, 32, v{TR0}')
    e(f'v_mov_b32 v{ONE}, 0x3f803f80')
    e(f'v_and_b32 v{TT}, 16, v0')
    e(f'v_cmp_eq_u32 s[{S_MASKK}:{S_MASKK+1}], 0, v{TT}')
    for u in range(4):
        load_cs(u)
        e('s_waitcnt lgkmcnt(0)')
        for rt in range(2):
            a = acc(u, rt)
            lnfix(a, rt)
            phi8(a, rt, OUTP)
            for p in range(4):
                pk('v_pk_mul_f32', a+8+2*p, a+8+2*p, RS, b1=rt)
            for p in range(4):
                e(f'v_cvt_pk_bf16_f32 v{OUTP+4+p}, v{a+8+2*p}, v{a+8+2*p+1}')
            e(f'ds_write_b128 v{TW}, v[{OUTP}:{OUTP+3}] offset:{2048*rt}')
            e(f'v_xor_b32 v{TT}, 32, v{TW}')
            e(f'ds_write_b128 v{TT}, v[{OUTP+4}:{OUTP+7}] offset:{2048*rt}')
        e('s_waitcnt lgkmcnt(0)')
        d2 = acc(u, 0)
        for q in range(4):
            f = XF + 4*(q & 1)
            e(f'ds_read_b64_tr_b16 v[{f}:{f+1}], v{TR0} offset:{1024*q}')
            e(f'ds_read_b64_tr_b16 v[{f+2}:{f+3}], v{TR1} offset:{1024*q + 256}')
            e('s_waitcnt lgkmcnt(0)')
            for k in range(4):
                e(f'v_cndmask_b32 v{92+k}, v{f+k}, v{ONE}, s[{S_MASKK}:{S_MASKK+1}]')
            c = '0' if q == 0 else f'v[{d2}:{d2+15}]'
            e(f'v_mfma_f32_32x32x16_bf16 v[{d2}:{d2+15}], v[{f}:{f+3}], v[92:95], {c}')
    e(f'v_lshlrev_b32 v{TT}, 5, v0')
    e(f's_lshl_b32 s{S_T1}, s{S_W}, 13')
    e(f's_add_u32 s{S_T1}, s{S_T1}, {T_D2}')
    e(f'v_add_u32 v{TT}, s{S_T1}, v{TT}')
    for u in range(4):
        d2 = acc(u, 0)
        e(f'ds_write_b128 v{TT}, v[{d2}:{d2+3}] offset:{2048*u}')
        e(f'ds_write_b128 v{TT}, v[{d2+4}:{d2+7}] offset:{2048*u+16}')

def emit_g1_publish(e, fused):
    T = 12
    e(f's_cmp_lg_u32 s{S_TYPE}, 1')
    e('s_cbranch_scc1 L_pub_nokv')
    e(f's_lshr_b32 s{S_T0}, s{S_WAVE}, 1')
    e(f's_and_b32 s{S_T1}, s{S_WAVE}, 1')
    e(f's_lshl_b32 s{S_T2}, s{S_T0}, 11')
    e(f's_lshl_b32 s{S_T3}, s{S_T1}, 10')
    e(f's_add_u32 s{S_T2}, s{S_T2}, s{S_T3}')
    e(f's_add_u32 s{S_T2}, s{S_T2}, {T_D2 + 512}')
    e(f'v_lshlrev_b32 v{T}, 2, v0')
    e(f'v_add_u32 v{T+1}, s{S_T2}, v{T}')
    for w in range(4):
        e(f'ds_read_b32 v{T+2+w}, v{T+1} offset:{8192*w}')
        e(f'ds_read_b32 v{T+6+w}, v{T+1} offset:{8192*w + 256}')
    e(f'v_lshrrev_b32 v{T+10}, 3, v0')
    e(f'v_lshlrev_b32 v{T+10}, 10, v{T+10}')
    e(f'v_and_b32 v{T+11}, 7, v0')
    e(f'v_lshl_add_u32 v{T+10}, v{T+11}, 2, v{T+10}')
    e(f's_lshl_b32 s{S_T3}, s{S_T0}, 11')
    e(f's_add_u32 s{S_T3}, s{S_T3}, {T_D2}')
    e(f'v_add_u32 v{T+10}, s{S_T3}, v{T+10}')
    e(f'v_and_b32 v{T+10}, 0x3ffff, v{T+10}')
    e(f'v_cmp_gt_u32 vcc, 16, v0')
    e(f's_and_saveexec_b64 s[{S_EX}:{S_EX+1}], vcc')
    for w in range(4):
        e(f'ds_read_b32 v{T+12+w}, v{T+10} offset:{8192*w}')
    e(f's_mov_b64 exec, s[{S_EX}:{S_EX+1}]')
    e(f's_lshl_b32 s{S_T2}, s{S_I}, 2')
    e(f's_add_u32 s{S_T2}, s{S_T2}, s{S_T0}')
    e(f's_mul_i32 s{S_T2}, s{S_T2}, {KV_STRIDE}')
    e(f's_add_u32 s{S_T2}, s{S_T2}, {WS_KV}')
    e(f's_add_u32 s{S_KVB}, s{S_WS}, s{S_T2}'); e(f's_addc_u32 s{S_KVB+1}, s{S_WS+1}, 0')
    e(f's_lshl_b32 s{S_T3}, s{S_T1}, 9')
    e(f'v_add_u32 v{T+1}, s{S_T3}, v{T}')
    e('s_waitcnt lgkmcnt(0)')
    e(f'v_add_f32 v{T+2}, v{T+2}, v{T+3}'); e(f'v_add_f32 v{T+4}, v{T+4}, v{T+5}')
    e(f'v_add_f32 v{T+6}, v{T+6}, v{T+7}'); e(f'v_add_f32 v{T+8}, v{T+8}, v{T+9}')
    e(f'v_add_f32 v{T+12}, v{T+12}, v{T+13}'); e(f'v_add_f32 v{T+14}, v{T+14}, v{T+15}')
    e(f'v_add_f32 v{T+2}, v{T+2}, v{T+4}'); e(f'v_add_f32 v{T+6}, v{T+6}, v{T+8}'); e(f'v_add_f32 v{T+12}, v{T+12}, v{T+14}')
    e(f'global_atomic_add_f32 v{T+1}, v{T+2}, {pair(S_KVB)}')
    e(f'global_atomic_add_f32 v{T+1}, v{T+6}, {pair(S_KVB)} offset:256')
    e(f's_cmp_lg_u32 s{S_T1}, 0')
    e('s_cbranch_scc1 L_pub_noz')
    e(f's_mov_b64 s[{S_EX}:{S_EX+1}], exec')
    e('s_mov_b64 exec, 0xffff')
    e(f'global_atomic_add_f32 v{T}, v{T+12}, {pair(S_KVB)} offset:1024')
    e(f's_mov_b64 exec, s[{S_EX}:{S_EX+1}]')
    e.label('L_pub_noz')
    e.label('L_pub_nokv')


BUF = [0, STAGE, 2*STAGE]
V_W2V = 1
V_TA0 = 2
V_L16 = 6
V_H0, V_H1 = 7, 8
V_T = 9
ACC2 = 192
def acc2(nt, mt): return ACC2 + (nt*2 + mt)*16
CIDX = 76

def emit_g2_decode(e):
    e(f's_and_b32 s{S_X8}, s2, 7')
    e(f's_lshr_b32 s{S_T0}, s2, 3')
    e(f's_and_b32 s{S_C2}, s{S_T0}, 7')
    e(f's_lshr_b32 s{S_T0}, s{S_T0}, 3')
    e(f's_lshl_b32 s{S_R2}, s{S_X8}, 2')
    e(f's_add_u32 s{S_R2}, s{S_R2}, s{S_T0}')
    e(f's_mov_b32 s{S_SRDW2}, s{S_W2}'); e(f's_mov_b32 s{S_SRDW2+1}, s{S_W2+1}')
    e(f's_mov_b32 s{S_SRDW2+2}, {1792*1024}'); e(f's_mov_b32 s{S_SRDW2+3}, 0x00020000')
    e(f's_mov_b32 s{S_SRDWO}, s{S_WO}'); e(f's_mov_b32 s{S_SRDWO+1}, s{S_WO+1}')
    e(f's_mov_b32 s{S_SRDWO+2}, {512*1024}'); e(f's_mov_b32 s{S_SRDWO+3}, 0x00020000')

def emit_w2_voff(e, dst, t):
    e(f'v_lshrrev_b32 v{t}, 3, v0')
    e(f'v_lshlrev_b32 v{t}, 10, v{t}')
    e(f'v_bfe_u32 v{t+1}, v0, 4, 1')
    e(f'v_lshlrev_b32 v{t+1}, 2, v{t+1}')
    e(f'v_and_b32 v{dst}, 7, v0')
    e(f'v_xor_b32 v{dst}, v{dst}, v{t+1}')
    e(f'v_lshl_add_u32 v{dst}, v{dst}, 4, v{t}')

def w2_step_dma(e, vreg, sigma, s_w2row, s_worow, s_lds, ldsoff):
    for i in range(2):
        e(f's_add_u32 m0, s{s_lds}, {ldsoff + 1024*i}')
        if sigma < 14:
            e(f's_add_u32 s{S_T0}, s{s_w2row}, {(16*sigma + 8*i)*1024}')
            e(f'buffer_load_dwordx4 v{vreg}, s[{S_SRDW2}:{S_SRDW2+3}], s{S_T0} offen lds')
        else:
            e(f's_add_u32 s{S_T0}, s{s_worow}, {(16*(sigma-14) + 8*i)*1024}')
            e(f'buffer_load_dwordx4 v{vreg}, s[{S_SRDWO}:{S_SRDWO+3}], s{S_T0} offen lds')

S_W2ROW, S_WOROW, S_W2ROWC, S_WOROWC, S_REG = 56, 57, 58, 59, 60
def emit_w2_rows(e, s_v, d_w2, d_wo):
    e(f's_mul_i32 s{d_w2}, s{s_v}, {224*1024}')
    e(f's_lshl_b32 s{S_T0}, s{S_C2}, 7')
    e(f's_add_u32 s{d_w2}, s{d_w2}, s{S_T0}')
    e(f's_lshl_b32 s{d_wo}, s{s_v}, 16')
    e(f's_add_u32 s{d_wo}, s{d_wo}, s{S_T0}')

def emit_tr_addr(e, dst0, dst1, s_base, T):
    e(f'v_lshrrev_b32 v{T}, 5, v0')
    e(f'v_lshlrev_b32 v{T}, 3, v{T}')
    e(f'v_bfe_u32 v{T+1}, v0, 2, 2')
    e(f'v_add_u32 v{T}, v{T}, v{T+1}')
    e(f'v_lshlrev_b32 v{T}, 7, v{T}')
    e(f'v_bfe_u32 v{T+1}, v0, 3, 1')
    e(f'v_lshlrev_b32 v{T+1}, 2, v{T+1}')
    e(f'v_bfe_u32 v{T+2}, v0, 4, 1')
    e(f'v_lshl_add_u32 v{T+1}, v{T+2}, 1, v{T+1}')
    e(f'v_bfe_u32 v{T+2}, v0, 1, 1')
    e(f'v_add_u32 v{T+1}, v{T+1}, v{T+2}')
    e(f'v_lshl_add_u32 v{T}, v{T+1}, 4, v{T}')
    e(f'v_and_b32 v{T+1}, 1, v0')
    e(f'v_lshl_add_u32 v{T}, v{T+1}, 3, v{T}')
    e(f'v_add_u32 v{dst0}, s{s_base}, v{T}')
    e(f'v_xor_b32 v{dst1}, 64, v{dst0}')

def afrag_reads(dst, areg, off):
    r = []
    for nt in range(2):
        for jj in range(2):
            r.append(f'ds_read_b64_tr_b16 v[{dst+4*nt+2*jj}:{dst+4*nt+2*jj+1}], v{areg+nt} offset:{off + 512*jj}')
    return r

W2L = 48
def emit_loader_w2(e, vm, stage_part):
    T = 112
    if stage_part == 0:
        emit_w2_voff(e, V_W2V, T)
        e(f's_add_u32 s{S_T3}, s{S_W}, 4')
        e(f's_mov_b32 s{S_KAPM}, s{S_T3}')
        emit_w2_rows(e, S_KAPM, S_W2ROW, S_WOROW)
        emit_w2_rows(e, S_W, S_W2ROWC, S_WOROWC)
        e(f's_mul_i32 s{S_REG}, s{S_W}, 12288')
        e(f's_add_u32 s{S_KAP4}, s{S_REG}, {BUF[2]}')
        emit_tr_addr(e, V_TA0, V_TA0+1, S_KAP4, T)
        emit_tr_addr(e, V_TA0+2, V_TA0+3, S_REG, T)
        for k in range(6): w2_step_dma(e, V_W2V, k, S_W2ROW, S_WOROW, S_KAP4, 2048*k); vm.issue(); vm.issue('L0')
    elif stage_part == 1:
        for k in range(6): w2_step_dma(e, V_W2V, 6+k, S_W2ROW, S_WOROW, S_REG, 2048*k); vm.issue(); vm.issue('L1')
    else:
        vm.wait('L0')
        for k in range(6):
            for r_ in afrag_reads(W2L + 8*k, V_TA0, 2048*k): e(r_)
        e('s_waitcnt lgkmcnt(0)')
        for k in range(6): w2_step_dma(e, V_W2V, 12+k, S_W2ROW, S_WOROW, S_KAP4, 2048*k); vm.issue(); vm.issue('L2')
        vm.wait('L1')
        for k in range(6):
            for r_ in afrag_reads(W2L + 8*(6+k), V_TA0+2, 2048*k): e(r_)
        e('s_waitcnt lgkmcnt(0)')
        for k in range(6): w2_step_dma(e, V_W2V, k, S_W2ROWC, S_WOROWC, S_REG, 2048*k); vm.issue(); vm.issue('C0')
        vm.wait('L2')
        for k in range(6):
            for r_ in afrag_reads(W2L + 8*(12+k), V_TA0, 2048*k): e(r_)
        e('s_waitcnt lgkmcnt(0)')
        for k in range(6): w2_step_dma(e, V_W2V, 6+k, S_W2ROWC, S_WOROWC, S_KAP4, 2048*k); vm.issue(); vm.issue('C1')

def hflag_masks():
    def cA(i): return 8*(i >> 2) + (i & 3)
    def cB1(i): return 8*(i >> 1) + 4 + (i & 1)
    def cB2(i): return 8*(i >> 1) + 6 + (i & 1)
    ms = []
    for v in range(8):
        m = 0
        for k in range(14*v, 14*v + 14):
            c = cA(k >> 2) if k < 64 else (cB2((k - 64)//5) if k < 104 else cB1(k - 104))
            m |= 1 << c
        m |= 1 << cA(2*v); m |= 1 << cA(2*v + 1)
        ms.append(m)
    return ms

def set_flag(e, s_off, T):
    e(f'v_mov_b32 v{T}, s{s_off}'); e(f'v_mov_b32 v{T+1}, 1')
    e(f's_mov_b64 s[{S_EX}:{S_EX+1}], exec'); e('s_mov_b64 exec, 1')
    e(f'global_store_dword v{T}, v{T+1}, {pair(S_WS)} sc1')
    e(f's_mov_b64 exec, s[{S_EX}:{S_EX+1}]')

def poll_flags(e, name, v_addr, v_tmp, s_mask):
    e(f's_mov_b32 s{S_T2}, 0')
    e.label(f'L_poll_{name}')
    e(f'global_load_dword v{v_tmp}, v{v_addr}, {pair(S_WS)} sc1')
    e('s_waitcnt vmcnt(0)')
    e(f'v_cmp_ne_u32 vcc, 0, v{v_tmp}')
    e(f's_add_u32 s{S_T2}, s{S_T2}, 1')
    e('s_nop 2')
    e(f's_and_b32 s{S_T3}, vcc_lo, s{s_mask}')
    e(f's_cmp_eq_u32 s{S_T3}, s{s_mask}')
    e(f's_cbranch_scc1 L_pollok_{name}')
    e(f's_cmp_lt_u32 s{S_T2}, 400000')
    e(f's_cbranch_scc1 L_poll_{name}')
    e.label(f'L_pollok_{name}')

def emit_g2(e):
    T = V_T
    S_HBASE, S_PQBASE, S_MASK = 62, 64 + 4, 61
    e('s_barrier')
    e(f's_lshl_b32 s{S_T0}, s{S_R2}, 6')
    e(f's_lshl_b32 s{S_T1}, s{S_WAVE}, 3')
    e(f's_add_u32 s{S_T0}, s{S_T0}, s{S_T1}')
    e(f's_lshl_b32 s{S_T0}, s{S_T0}, 10')
    e(f's_lshl_b32 s{S_T1}, s{S_C2}, 7')
    e(f's_add_u32 s{S_HEAD}, s{S_T0}, s{S_T1}')
    e(f's_lshl_b32 s{S_T0}, s{S_R2}, 1')
    e(f's_mul_i32 s{S_T1}, s{S_T0}, 112')
    e(f's_mul_i32 s{S_T2}, s{S_WAVE}, 14')
    e(f's_add_u32 s{S_T1}, s{S_T1}, s{S_T2}')
    e(f's_lshl_b32 s{S_T1}, s{S_T1}, 10')
    e(f's_add_u32 s{S_HBASE}, s{S_WS}, s{S_T1}'); e(f's_addc_u32 s{S_HBASE+1}, s{S_WS+1}, 0')
    e(f's_lshl_b32 s{S_T1}, s{S_T0}, 5')
    e(f's_lshl_b32 s{S_T2}, s{S_WAVE}, 2')
    e(f's_add_u32 s{S_T1}, s{S_T1}, s{S_T2}')
    e(f's_lshl_b32 s{S_T1}, s{S_T1}, 10')
    e(f's_add_u32 s{S_T1}, s{S_T1}, {WS_PQ}')
    e(f's_add_u32 s{S_PQBASE}, s{S_WS}, s{S_T1}'); e(f's_addc_u32 s{S_PQBASE+1}, s{S_WS+1}, 0')
    ms = hflag_masks()
    e(f's_mov_b32 s{S_MASK}, {ms[0]:#x}')
    for v in range(1, 8):
        e(f's_cmp_eq_u32 s{S_WAVE}, {v}')
        e(f's_cselect_b32 s{S_MASK}, {ms[v]:#x}, s{S_MASK}')
    e(f'v_lshlrev_b32 v{V_L16}, 4, v0')
    e(f's_cmp_ge_u32 s{S_WAVE}, 4')
    e('s_cbranch_scc1 L_g2_l')
    emit_g2_wave(e, True, S_HBASE, S_PQBASE, S_MASK)
    e('s_branch L_g2_fin')
    e.label('L_g2_l')
    emit_g2_wave(e, False, S_HBASE, S_PQBASE, S_MASK)
    e.label('L_g2_fin')
    emit_g2_final(e)

def emit_g2_wave(e, is_c, S_HBASE, S_PQBASE, S_MASK):
    vm = VM(e)
    T = V_T
    nm = 'c' if is_c else 'l'
    XRES = 188 if is_c else 44
    if is_c:
        emit_w2_voff(e, V_W2V, T)
        emit_w2_rows(e, S_WAVE, S_W2ROW, S_WOROW)
        e(f's_mul_i32 s{S_REG}, s{S_WAVE}, 12288')
        e(f's_add_u32 s{S_T1}, s{S_REG}, {BUF[1]}')
        e(f's_mov_b32 s{S_KAP4}, s{S_T1}')
        for k in range(6): w2_step_dma(e, V_W2V, 12+k, S_W2ROW, S_WOROW, S_KAP4, 2048*k); vm.issue(); vm.issue('w2c')
        emit_tr_addr(e, V_TA0, V_TA0+1, S_REG, T)
        e(f's_add_u32 s{S_T1}, s{S_REG}, {BUF[2]}')
        e(f's_mov_b32 s{S_KAPM}, s{S_T1}')
        emit_tr_addr(e, V_TA0+2, V_TA0+3, S_KAPM, T)
    e(f'v_lshrrev_b32 v{T}, 3, v0')
    e(f'v_lshlrev_b32 v{T}, 10, v{T}')
    e(f'v_and_b32 v{T+1}, 7, v0')
    e(f'v_lshl_add_u32 v{T}, v{T+1}, 4, v{T}')
    e(f'v_add_u32 v{T}, s{S_HEAD}, v{T}')
    e(f'global_load_dwordx4 v[{XRES}:{XRES+3}], v{T}, {pair(S_X)}'); vm.issue('xres')
    e(f'v_mov_b32 v{V_H0}, v{V_L16}')
    e(f'v_add_u32 v{V_H1}, {112*1024}, v{V_L16}')
    for k in range(64): e(f'v_mov_b32 v{ACC2+k}, 0')
    e(f's_lshl_b32 s{S_T0}, s{S_X8}, 2')
    e(f's_and_b32 s{S_T1}, s{S_R2}, 3')
    e(f's_add_u32 s{S_T0}, s{S_T0}, s{S_T1}')
    e(f's_lshl_b32 s{S_T0}, s{S_T0}, 7')
    e(f's_add_u32 s{S_T0}, s{S_T0}, {WS_HF}')
    e(f'v_and_b32 v{T}, 31, v0')
    e(f'v_lshlrev_b32 v{T}, 2, v{T}')
    e(f'v_add_u32 v{T}, s{S_T0}, v{T}')
    e('s_waitcnt vmcnt(0)')
    e('s_barrier')
    e(f's_cmp_lg_u32 s{S_TYPE}, 1')
    e(f's_cbranch_scc1 L_g2_nokvarr{nm}')
    e(f's_cmp_lg_u32 s{S_WAVE}, {3 if is_c else 8}')
    e(f's_cbranch_scc1 L_g2_nokvarr{nm}')
    e(f's_lshl_b32 s{S_T0}, s{S_I}, 7')
    e(f's_lshl_b32 s{S_T1}, s{S_R}, 2')
    e(f's_add_u32 s{S_T0}, s{S_T0}, s{S_T1}')
    e(f's_add_u32 s{S_T0}, s{S_T0}, {WS_KF}')
    set_flag(e, S_T0, T+1)
    e.label(f'L_g2_nokvarr{nm}')
    stamp(e, 5)
    poll_flags(e, 'h' + nm, T, T+1, S_MASK)
    stamp(e, 6)
    vm = VM(e)
    hoff = [0]
    def h_load(sg, r0, r1):
        grp = sg // 4
        if grp != hoff[0]:
            d = (grp - hoff[0]) * 4096
            e(f'v_add_u32 v{V_H0}, {d}, v{V_H0}'); e(f'v_add_u32 v{V_H1}, {d}, v{V_H1}')
            hoff[0] = grp
        for mt, r in ((0, r0), (1, r1)):
            e(f'global_load_dwordx4 v[{r}:{r+3}], v{V_H0+mt}, {pair(S_HBASE)} offset:{(sg % 4)*1024} sc1')
            vm.issue(('h', sg))
    def pq_load(hd, r0, r1):
        for mt, r in ((0, r0), (1, r1)):
            e(f'global_load_dwordx4 v[{r}:{r+3}], v{10+mt}, {pair(S_PQBASE)} offset:{hd*1024} sc1')
            vm.issue(('h', 14 + hd))
    def load_step(sg, r0, r1):
        if sg < 14: h_load(sg, r0, r1)
        else: pq_load(sg - 14, r0, r1)
    e(f'v_mov_b32 v10, v{V_L16}')
    e(f'v_add_u32 v11, {32*1024}, v{V_L16}')
    hreg = {}
    if is_c:
        for sg in range(18):
            hreg[sg] = (12 + 8*sg, 16 + 8*sg)
            load_step(sg, *hreg[sg])
        JIT = [160, 168]
        free = []
    else:
        for sg in range(4):
            hreg[sg] = (12 + 8*sg, 16 + 8*sg)
            load_step(sg, *hreg[sg])
        nxt = [4]
    def jit_reads(sg):
        dst = JIT[sg & 1]
        if sg < 6: return afrag_reads(dst, V_TA0, 2048*sg)
        if sg < 12: return afrag_reads(dst, V_TA0+2, 2048*(sg-6))
        return afrag_reads(dst, V_TA0, BUF[1] + 2048*(sg-12))
    def afr(sg): return JIT[sg & 1] if is_c else W2L + 8*sg
    def mm(a_, b0, b1):
        for nt in range(2):
            for mt, b in ((0, b0), (1, b1)):
                a = acc2(nt, mt)
                e(f'v_mfma_f32_32x32x16_bf16 v[{a}:{a+15}], v[{a_+4*nt}:{a_+4*nt+3}], v[{b}:{b+3}], v[{a}:{a+15}]')
    def refill(sg):
        if is_c: return
        for pool in (hreg[sg], (W2L + 8*sg, W2L + 8*sg + 4)):
            if nxt[0] < 18:
                hreg[nxt[0]] = pool
                load_step(nxt[0], *pool); nxt[0] += 1
    if is_c:
        for r_ in jit_reads(0): e(r_)
    KVP = 176 if is_c else None
    for sg in range(14):
        vm.wait(('h', sg))
        if is_c:
            e('s_waitcnt lgkmcnt(0)')
            for r_ in jit_reads(sg + 1): e(r_)
        mm(afr(sg), *hreg[sg])
        refill(sg)
    stamp(e, 7)
    e(f's_lshl_b32 s{S_T0}, s{S_WAVE}, 7')
    e(f's_add_u32 s{S_T0}, s{S_T0}, {WS_KF}')
    e(f'v_and_b32 v{T}, 7, v0')
    e(f'v_lshlrev_b32 v{T}, 2, v{T}')
    e(f'v_add_u32 v{T}, s{S_T0}, v{T}')
    e(f's_mov_b32 s{S_MASK}, 0xff')
    poll_flags(e, 'kv' + nm, T, T+1, S_MASK)
    vm = VM(e)
    if is_c:
        KVRAW, KVF, OD, OB = 12, 44, 60, 92
    else:
        used = set()
        for sg in range(14, 18):
            for r in hreg[sg]: used |= set(range(r, r+4))
        used |= set(range(W2L + 8*14, W2L + 8*18)) | set(range(XRES, XRES+4))
        def alloc(n):
            for base in range(12, 192 - n + 1, 4):
                if not (set(range(base, base+n)) & used):
                    used.update(range(base, base+n)); return base
            raise RuntimeError('no regs')
        KVRAW = alloc(32); KVF = alloc(16); OD = alloc(32); OB = alloc(8)
    e(f'v_lshrrev_b32 v{T}, 5, v0')
    e(f'v_and_b32 v{T+1}, 15, v0')
    e(f'v_lshlrev_b32 v{T+1}, 5, v{T+1}')
    e(f'v_lshl_add_u32 v{T+1}, v{T}, 9, v{T+1}')
    e(f'v_lshlrev_b32 v{T}, 5, v{T}')
    e(f'v_add_u32 v{T}, 1024, v{T}')
    e(f'v_and_b32 v{T+2}, 16, v0')
    e(f'v_cmp_eq_u32 vcc, 0, v{T+2}')
    e(f'v_cndmask_b32 v{T}, v{T+1}, v{T}, vcc')
    e(f's_mul_i32 s{S_T0}, s{S_WAVE}, {4*KV_STRIDE}')
    e(f's_add_u32 s{S_T0}, s{S_T0}, {WS_KV}')
    e(f's_add_u32 s{S_KVB}, s{S_WS}, s{S_T0}'); e(f's_addc_u32 s{S_KVB+1}, s{S_WS+1}, 0')
    for hd in range(4):
        for q in range(2):
            off = hd*KV_STRIDE + 16*q
            e(f'global_load_dwordx4 v[{KVRAW+8*hd+4*q}:{KVRAW+8*hd+4*q+3}], v{T}, {pair(S_KVB)} offset:{off} sc1')
            vm.issue(('kv', hd))
    e(f's_mov_b32 s{S_T2}, {fhex(1e-6)}')
    e('s_waitcnt vmcnt(0)')
    for hd in range(4):
        for p in range(4):
            e(f'v_cvt_pk_bf16_f32 v{KVF+4*hd+p}, v{KVRAW+8*hd+2*p}, v{KVRAW+8*hd+2*p+1}')
    for hd in range(4):
        sg = 14 + hd
        for mt in range(2):
            b = hreg[sg][mt]
            d = OD + 16*mt
            e(f'v_mfma_f32_32x32x16_bf16 v[{d}:{d+15}], v[{KVF+4*hd}:{KVF+4*hd+3}], v[{b}:{b+3}], 0')
        if is_c:
            e('s_waitcnt lgkmcnt(0)')
            if sg + 1 <= 17:
                for r_ in jit_reads(sg + 1): e(r_)
        for mt in range(2):
            d = OD + 16*mt
            o = OB + 4*mt
            e(f'v_add_f32 v{T+mt}, s{S_T2}, v{d}')
        for mt in range(2):
            e(f'v_rcp_f32 v{T+mt}, v{T+mt}')
        for mt in range(2):
            d = OD + 16*mt
            o = OB + 4*mt
            for k in range(8): e(f'v_mul_f32 v{d+8+k}, v{T+mt}, v{d+8+k}')
            for p in range(4): e(f'v_cvt_pk_bf16_f32 v{o+p}, v{d+8+2*p}, v{d+8+2*p+1}')
        mm(afr(sg), OB, OB + 4)
    stamp(e, 8)
    for k in range(4): e(f'v_mov_b32 v{8+k if False else 116+k}, v{XRES+k}') if XRES != 116 else None

def emit_g2_final(e):
    T = V_T
    XRES = 116
    e('s_waitcnt lgkmcnt(0)')
    e('s_barrier')
    e(f'v_and_b32 v{T}, 31, v0')
    e(f'v_mul_u32_u24 v{T}, 272, v{T}')
    e(f'v_lshrrev_b32 v{T+1}, 5, v0')
    e(f'v_lshl_add_u32 v{T}, v{T+1}, 4, v{T}')
    e(f's_mul_i32 s{S_T0}, s{S_WAVE}, 17408')
    e(f'v_add_u32 v{T}, s{S_T0}, v{T}')
    for nt in range(2):
        for mt in range(2):
            a = acc2(nt, mt)
            for j in range(4):
                e(f'ds_write_b128 v{T}, v[{a+4*j}:{a+4*j+3}] offset:{mt*32*272 + nt*128 + j*32}')
    e(f'v_lshrrev_b32 v{T+1}, 3, v0')
    e(f's_lshl_b32 s{S_T0}, s{S_WAVE}, 3')
    e(f'v_add_u32 v{T+1}, s{S_T0}, v{T+1}')
    e(f'v_mul_u32_u24 v{T+1}, 272, v{T+1}')
    e(f'v_and_b32 v{T+2}, 7, v0')
    e(f'v_lshl_add_u32 v{T+1}, v{T+2}, 5, v{T+1}')
    e(f'v_add_u32 v{T+2}, {4*17408}, v{T+1}')
    for k in range(4):
        e(f'v_lshlrev_b32 v{100+2*k}, 16, v{XRES+k}')
        e(f'v_and_b32 v{101+2*k}, 0xffff0000, v{XRES+k}')
    e('s_waitcnt lgkmcnt(0)')
    e('s_barrier')
    RD = 12
    for p in range(8):
        a = T+1 if p < 4 else T+2
        for q in range(2):
            e(f'ds_read_b128 v[{RD+8*p+4*q}:{RD+8*p+4*q+3}], v{a} offset:{(p%4)*17408 + 16*q}')
    e(f'v_lshrrev_b32 v{T}, 3, v0')
    e(f'v_lshlrev_b32 v{T}, 10, v{T}')
    e(f'v_and_b32 v1, 7, v0')
    e(f'v_lshl_add_u32 v{T}, v1, 4, v{T}')
    e(f'v_add_u32 v{T}, s{S_HEAD}, v{T}')
    for half in range(2):
        e(f's_waitcnt lgkmcnt({8 if half == 0 else 0})')
        for p in range(4*half, 4*half+4):
            for q in range(4):
                e(f'v_pk_add_f32 v[{100+2*q}:{101+2*q}], v[{100+2*q}:{101+2*q}], v[{RD+8*p+2*q}:{RD+8*p+2*q+1}]')
    for q in range(4):
        e(f'v_cvt_pk_bf16_f32 v{108+q}, v{100+2*q}, v{101+2*q}')
    e(f'global_store_dwordx4 v{T}, v[108:111], {pair(S_OUT)}')

def gen_fused():
    e = Emitter()
    emit_common_decode(e)
    emit_g1_decode(e)
    e(f's_cmp_ge_u32 s{S_WAVE}, 4')
    e('s_cbranch_scc1 L_loader')
    emit_g1_compute(e)
    emit_g2_decode(e)
    emit_g1_epilogue(e)
    e('s_waitcnt vmcnt(0) lgkmcnt(0)')
    e(f's_lshl_b32 s{S_T0}, s{S_R}, 2')
    e(f's_add_u32 s{S_T0}, s{S_T0}, s{S_W}')
    e(f's_lshl_b32 s{S_T0}, s{S_T0}, 5')
    e(f's_add_u32 s{S_T0}, s{S_T0}, s{CIDX}')
    e(f's_lshl_b32 s{S_T0}, s{S_T0}, 2')
    e(f's_add_u32 s{S_T0}, s{S_T0}, {WS_HF}')
    set_flag(e, S_T0, 2)
    stamp(e, 4)
    e('s_barrier')
    e('s_branch L_pub')
    emit_g1_loader(e, True)
    e('s_waitcnt vmcnt(0)')
    stamp(e, 4)
    e('s_barrier')
    e.label('L_pub')
    emit_g1_publish(e, True)
    emit_g2(e)
    e('s_waitcnt vmcnt(0)')
    stamp(e, 9)
    stamp(e, 10, real=True)
    stamp_flush(e)
    e.label('L_end')
    e('s_endpgm')
    return pad_hazards(e.lines)

def kernel_desc(name, vg=256, sg=102):
    return f'''.section .rodata,"a"
.p2align 6
.amdhsa_kernel {name}
  .amdhsa_next_free_vgpr {vg}
  .amdhsa_next_free_sgpr {sg}
  .amdhsa_accum_offset {vg}
  .amdhsa_group_segment_fixed_size 0
  .amdhsa_kernarg_size 80
  .amdhsa_user_sgpr_count 2
  .amdhsa_user_sgpr_kernarg_segment_ptr 1
  .amdhsa_system_sgpr_workgroup_id_x 1
  .amdhsa_float_denorm_mode_32 3
.end_amdhsa_kernel
'''

def gen_g1_only():
    e = Emitter()
    emit_common_decode(e)
    emit_g1_decode(e)
    e(f's_cmp_ge_u32 s{S_WAVE}, 4')
    e('s_cbranch_scc1 L_loader')
    emit_g1_compute(e)
    emit_g1_epilogue(e)
    e('s_waitcnt vmcnt(0) lgkmcnt(0)')
    e('s_barrier')
    e('s_branch L_pub')
    emit_g1_loader(e, False)
    e('s_barrier')
    e.label('L_pub')
    emit_g1_publish(e, False)
    e('s_waitcnt vmcnt(0)')
    stamp(e, 9)
    stamp(e, 10, real=True)
    stamp_flush(e)
    e.label('L_end')
    e('s_endpgm')
    return pad_hazards(e.lines)

HEADER = open(__file__.replace('gen.py', 'header.txt')).read() if False else None

def write_file(path, launches, kernels):
    hdr = []
    ref = open('cdna_kernels/' + NAME + '.s.ref').read().split('\n')
    for l in ref:
        if l.startswith(';') and '@launch' not in l: hdr.append(l)
        elif '@launch' in l: pass
        else: break
    out = hdr + launches + ['.amdgcn_target "amdgcn-amd-amdhsa--gfx950"', '.text']
    descs = []
    for name, lines in kernels:
        out += [f'.globl {name}', '.p2align 8', f'.type {name},@function', f'{name}:']
        pre = name[:2]
        out += lines
        descs.append(kernel_desc(name))
    out += descs
    open(path, 'w').write('\n'.join(out) + '\n')

if __name__ == '__main__':
    mode = sys.argv[1]
    if 'stamps' in sys.argv: STAMPS = True
    EXP.update(sys.argv[3:])
    path = sys.argv[2]
    if mode == 'fused':
        write_file(path, [f'; @launch grid=(256,1,1) block=(512,1,1) lds={LDS_TOTAL}'], [(NAME + '_kernel', gen_fused())])
    if mode == 'g1':
        write_file(path, [f'; @launch kernel=g1_kernel grid=(256,1,1) block=(512,1,1) lds={LDS_TOTAL}'], [('g1_kernel', gen_g1_only())])
```
